```python
import torch

def _softmax(x, axis=-1):
    return torch.softmax(x, dim=axis)
def _gelu(x):
    return torch.nn.functional.gelu(x, approximate="tanh")
def _silu(x):
    return torch.nn.functional.silu(x)
def _sigmoid(x):
    return torch.sigmoid(x)
def _layernorm(x, axis=-1, eps=1e-5):
    m = x.mean(dim=axis, keepdim=True)
    v = x.var(dim=axis, keepdim=True, unbiased=False)
    return (x - m) / torch.sqrt(v + eps)
def _scatter_add(tgt, idx, src, axis=0):
    return tgt.clone().index_add_(axis, idx, src)
def _segment_sum(src, seg, n):
    out = torch.zeros((n,) + src.shape[1:], dtype=src.dtype)
    return out.index_add_(0, seg, src)
def _pad(x, pw):
    flat = tuple(v for pair in reversed(pw) for v in pair)
    return torch.nn.functional.pad(x, flat)

kernel_name = 'parallel_sum__linear_attn_block__glu_gated_swiglu__prompt'

def setup_inputs():

    _w = (lambda a: (lambda t: t.to(torch.bfloat16) if t.is_floating_point() else t)(torch.as_tensor(a)))
    def _A_setup():
        B, S, D = 1, 2048, 640
        return {
            "x": _w((lambda *s: torch.randn(*s, dtype=torch.bfloat16) * 0.05)(B, S, D)),
            "wqkv": _w((lambda *s: torch.randn(*s, dtype=torch.bfloat16) * 0.05)(D, 3 * D)),
            "wo": _w((lambda *s: torch.randn(*s, dtype=torch.bfloat16) * 0.05)(D, D)),
        }
    _A_in = _A_setup()

    def _B_setup():
        B, S, D, F = 1, 2048, 640, 1536
        return {
            "x": _w((lambda *s: torch.randn(*s, dtype=torch.bfloat16) * 0.05)(B, S, D)),
            "w1": _w((lambda *s: torch.randn(*s, dtype=torch.bfloat16) * 0.2)(D, F) * (2.0 / D) ** 0.5),
            "w3": _w((lambda *s: torch.randn(*s, dtype=torch.bfloat16) * 0.2)(D, F) * (2.0 / D) ** 0.5),
            "w2": _w((lambda *s: torch.randn(*s, dtype=torch.bfloat16) * 0.2)(F, D) * (2.0 / F) ** 0.5),
        }
    _B_in = _B_setup()

    return {
        "A_x": _A_in["x"],
        "A_wqkv": _A_in["wqkv"],
        "A_wo": _A_in["wo"],
        "B_x": _B_in["x"],
        "B_w1": _B_in["w1"],
        "B_w3": _B_in["w3"],
        "B_w2": _B_in["w2"],
    }

def reference(A_x, A_wqkv, A_wo, B_x, B_w1, B_w3, B_w2):
    def _A_ref(x, wqkv, wo):
        B, S, D = x.shape
        H = 32; Dh = D // H
        qkv = (lambda x, *d: x.permute(*d))((x @ wqkv).reshape(B, S, 3, H, Dh), 2, 0, 3, 1, 4)
        q, k, v = qkv[0], qkv[1], qkv[2]
        phi = lambda t: torch.where(t > 0, t + 1, torch.exp(t)) + 1e-6
        pq, pk = phi(q), phi(k)
        kv = torch.einsum("bhsd,bhse->bhde", pk, v)
        z = torch.einsum("bhsd->bhd", pk)
        num = torch.einsum("bhqd,bhde->bhqe", pq, kv)
        den = torch.einsum("bhqd,bhd->bhq", pq, z)[..., None] + 1e-6
        o = num / den
        return (lambda x, *d: x.permute(*d))(o, 0, 2, 1, 3).reshape(B, S, D) @ wo

    def _B_ref(x, w1, w3, w2):
        gate = torch.einsum("bsd,df->bsf", x, w1)
        up = torch.einsum("bsd,df->bsf", x, w3)
        h = _silu(gate) * up
        out = torch.einsum("bsf,fd->bsd", h, w2)
        return out

    x = A_x
    xn = _layernorm(x, axis=-1)
    return x + _A_ref(xn, A_wqkv, A_wo) + _B_ref(xn, B_w1, B_w3, B_w2)
```

```python
import re

class Inst:
    __slots__ = ('text', 'op', 'kind', 'vw', 'vr', 'sw', 'sr', 'tag', 'dummy', 'passes', 'cregs', 'meta', 'wide_store')
    def __init__(self, text, tag=None, dummy=False):
        self.text = text.strip()
        self.tag = tag
        self.dummy = dummy
        self.meta = None
        parse(self)
    def __repr__(self):
        return self.text

class Label:
    def __init__(self, name): self.name = name; self.text = name + ':'; self.kind = 'label'
class WaitTags:
    def __init__(self, tags): self.tags = set(tags); self.kind = 'waittags'; self.text = '; waittags'
class Drain:
    def __init__(self, vm=True, lgkm=True): self.vm = vm; self.lgkm = lgkm; self.kind = 'drain'
class SaveState:
    kind = 'savestate'; text = ''
class RestoreState:
    kind = 'restorestate'; text = ''
class Raw:
    def __init__(self, text): self.text = text; self.kind = 'raw'

_reg_re = re.compile(r'^(-|\|)?(v|a|s)(\d+)\|?$')
_rng_re = re.compile(r'^(-|\|)?(v|a|s)\[(\d+):(\d+)\]\|?$')

def regs_of(tok):
    tok = tok.strip()
    if tok.startswith('abs(') or tok.startswith('neg('):
        tok = tok[4:-1]
    m = _reg_re.match(tok)
    if m: return [(m.group(2), int(m.group(3)))]
    m = _rng_re.match(tok)
    if m: return [(m.group(2), i) for i in range(int(m.group(3)), int(m.group(4)) + 1)]
    if tok == 'vcc': return [('s', 'vcc')]
    if tok in ('vcc_lo', 'vcc_hi'): return [('s', 'vcc')]
    if tok == 'exec': return [('s', 'exec')]
    if tok == 'm0': return [('s', 'm0')]
    if tok == 'scc': return [('s', 'scc')]
    return []

TRANS = ('v_exp_f32', 'v_log_f32', 'v_rcp_f32', 'v_rsq_f32', 'v_sqrt_f32', 'v_sin_f32', 'v_cos_f32')
NO_SCC = ('s_mov_b32', 's_mov_b64', 's_movk_i32', 's_cselect_b32', 's_cselect_b64', 's_mul_i32', 's_mul_hi_u32', 's_getreg_b32',
          's_load_dword', 's_load_dwordx2', 's_load_dwordx4', 's_load_dwordx8', 's_load_dwordx16', 's_memtime', 's_memrealtime', 's_mulk_i32')

def split_ops(s):
    out = []; depth = 0; cur = ''
    for ch in s:
        if ch == '[': depth += 1
        if ch == ']': depth -= 1
        if ch == ',' and depth == 0:
            out.append(cur.strip()); cur = ''
        else:
            cur += ch
    if cur.strip(): out.append(cur.strip())
    return out

def parse(I):
    t = I.text
    parts = t.split(None, 1)
    op = parts[0]
    rest = parts[1] if len(parts) > 1 else ''
    base = op
    for suf in ('_e32', '_e64', '_sdwa', '_dpp'):
        if base.endswith(suf): base = base[:-len(suf)]
    I.op = base
    I.vw = set(); I.vr = set(); I.sw = set(); I.sr = set()
    I.passes = 0; I.cregs = set(); I.wide_store = False
    ops = split_ops(rest)
    mods = []
    if ops:
        last = ops[-1].split()
        ops[-1] = last[0]
        mods = last[1:]
    def rd(tok):
        for r in regs_of(tok):
            (I.sr if r[0] == 's' else I.vr).add(r)
    def wr(tok):
        for r in regs_of(tok):
            (I.sw if r[0] == 's' else I.vw).add(r)
    if base.startswith('v_mfma'):
        I.kind = 'mfma'
        wr(ops[0]); rd(ops[1]); rd(ops[2]); rd(ops[3])
        I.cregs = set(regs_of(ops[3]))
        I.passes = 8 if '32x32x16' in base else 4
    elif base.startswith('v_cmp'):
        I.kind = 'valu'
        wr(ops[0]); rd(ops[1]); rd(ops[2])
    elif base in ('v_readfirstlane_b32', 'v_readlane_b32'):
        I.kind = 'valu'
        wr(ops[0]); [rd(o) for o in ops[1:]]
    elif base in ('v_permlane32_swap_b32', 'v_permlane16_swap_b32'):
        I.kind = 'valu'
        wr(ops[0]); wr(ops[1]); rd(ops[0]); rd(ops[1])
    elif base.startswith('v_'):
        I.kind = 'trans' if base in TRANS else 'valu'
        wr(ops[0])
        if base in ('v_add_co_u32', 'v_addc_co_u32', 'v_sub_co_u32'):
            wr(ops[1]); [rd(o) for o in ops[2:]]
        else:
            [rd(o) for o in ops[1:]]
        if base in ('v_fmac_f32', 'v_dot2c_f32_bf16', 'v_writelane_b32'):
            rd(ops[0])
        if base == 'v_cndmask_b32' and len(ops) == 3:
            I.sr.add(('s', 'vcc'))
    elif base.startswith('ds_'):
        I.kind = 'ds'
        if base.startswith('ds_read') or base.startswith('ds_bpermute') or base.startswith('ds_swizzle'):
            wr(ops[0]); [rd(o) for o in ops[1:]]
        else:
            [rd(o) for o in ops]
    elif base.startswith('buffer_'):
        if base in ('buffer_wbl2', 'buffer_inv'):
            I.kind = 'vmem'
        elif 'lds' in mods:
            I.kind = 'dma'
            [rd(o) for o in ops]
            I.sr.add(('s', 'm0'))
        elif base.startswith('buffer_load'):
            I.kind = 'vmem'
            wr(ops[0]); [rd(o) for o in ops[1:]]
        elif base.startswith('buffer_atomic') and 'sc0' in mods:
            I.kind = 'vmem'
            wr(ops[0]); [rd(o) for o in ops]
        else:
            I.kind = 'vmem'
            [rd(o) for o in ops]
            if 'x4' in base or 'x3' in base: I.wide_store = True
    elif base.startswith('global_'):
        I.kind = 'vmem'
        if base.startswith('global_load'):
            wr(ops[0]); [rd(o) for o in ops[1:]]
        else:
            [rd(o) for o in ops]
            if 'x4' in base or 'x3' in base: I.wide_store = True
    elif base.startswith('s_load') or base in ('s_memtime', 's_memrealtime'):
        I.kind = 'smem'
        wr(ops[0]); [rd(o) for o in ops[1:]]
    elif base in ('s_waitcnt',):
        I.kind = 'wait'
    elif base in ('s_nop',):
        I.kind = 'nop'
    elif base in ('s_barrier',):
        I.kind = 'barrier'
    elif base in ('s_branch', 's_endpgm', 's_setprio', 's_sleep') or base.startswith('s_cbranch'):
        I.kind = 'branch' if (base.startswith('s_cbranch') or base in ('s_branch', 's_endpgm')) else 'salu'
        if base.startswith('s_cbranch_scc'): I.sr.add(('s', 'scc'))
        if base.startswith('s_cbranch_vcc'): I.sr.add(('s', 'vcc'))
        if base.startswith('s_cbranch_exec'): I.sr.add(('s', 'exec'))
    elif base.startswith('s_cmp') or base.startswith('s_bitcmp'):
        I.kind = 'salu'
        [rd(o) for o in ops]
        I.sw.add(('s', 'scc'))
    elif base.startswith('s_'):
        I.kind = 'salu'
        wr(ops[0]); [rd(o) for o in ops[1:]]
        if base not in NO_SCC: I.sw.add(('s', 'scc'))
        if base.startswith('s_cselect') or base in ('s_addc_u32', 's_subb_u32'): I.sr.add(('s', 'scc'))
        if 'saveexec' in base:
            I.sw.add(('s', 'exec')); I.sr.add(('s', 'exec'))
        if base in ('s_addk_i32', 's_mulk_i32'): rd(ops[0])
    else:
        raise ValueError('cannot parse: ' + t)

def nstates(I):
    if I.kind == 'nop':
        return int(I.text.split()[1]) + 1
    if I.kind in ('label', 'waittags', 'drain'):
        return 0
    return 1

def insert_waits(seq, check=True):
    out = []
    vmq = []
    lgq = []
    def emit_wait(nvm, nlg):
        s = 's_waitcnt'
        if nvm is not None: s += ' vmcnt(%d)' % min(nvm, 63)
        if nlg is not None: s += ' lgkmcnt(%d)' % min(nlg, 15)
        out.append(Inst(s))
    def need(q, pred):
        idx = -1
        for i, o in enumerate(q):
            if pred(o): idx = i
        return idx
    saved = []
    for I in seq:
        if I.kind == 'label' or I.kind == 'raw':
            out.append(I); continue
        if I.kind == 'savestate':
            saved.append((list(vmq), list(lgq))); continue
        if I.kind == 'restorestate':
            vmq, lgq = saved.pop(); continue
        if I.kind == 'drain':
            nvm = 0 if (I.vm and vmq) else None
            nlg = 0 if (I.lgkm and lgq) else None
            if nvm is not None or nlg is not None: emit_wait(nvm, nlg)
            if I.vm: vmq = []
            if I.lgkm: lgq = []
            continue
        if I.kind == 'waittags':
            iv = need(vmq, lambda o: o.tag in I.tags)
            il = need(lgq, lambda o: o.tag in I.tags)
        elif I.kind == 'wait':
            m = re.search(r'vmcnt\((\d+)\)', I.text)
            if m:
                n = int(m.group(1)); vmq = vmq[max(0, len(vmq) - n):] if n < len(vmq) else vmq
            m = re.search(r'lgkmcnt\((\d+)\)', I.text)
            if m:
                n = int(m.group(1)); lgq = lgq[max(0, len(lgq) - n):] if n < len(lgq) else lgq
            out.append(I); continue
        else:
            touched_r = I.vr | I.sr
            touched_w = I.vw | I.sw
            def dep(o, same_class):
                if o.dummy: return False
                d = o.vw | o.sw
                if d & touched_r: return True
                if d & touched_w and not same_class: return True
                return False
            iv = need(vmq, lambda o: dep(o, I.kind in ('vmem', 'dma')))
            il = need(lgq, lambda o: dep(o, I.kind == 'ds' and o.kind == 'ds'))
        nvm = nlg = None
        if iv >= 0:
            nvm = len(vmq) - 1 - iv
            if nvm > 63:
                nvm = 63
            vmq = vmq[len(vmq) - nvm:] if nvm > 0 else []
        if il >= 0:
            if any(o.kind == 'smem' for o in lgq):
                nlg = 0
            else:
                nlg = min(len(lgq) - 1 - il, 15)
            lgq = lgq[len(lgq) - nlg:] if nlg > 0 else []
        if nvm is not None or nlg is not None:
            emit_wait(nvm, nlg)
        if I.kind == 'waittags':
            continue
        out.append(I)
        if I.kind in ('vmem', 'dma'):
            vmq.append(I)
        elif I.kind in ('ds', 'smem'):
            lgq.append(I)
            if I.kind == 'smem' and len(I.vw | I.sw) >= 2:
                pass
    return out

def insert_nops(seq):
    out = []
    W = 24
    def required(I, hist):
        req = 0
        for P, dist in hist:
            n = 0
            pk = P.kind
            if pk in ('valu', 'trans'):
                if I.kind == 'mfma' and (P.vw & I.vr): n = max(n, 2)
                if pk == 'trans' and I.kind != 'trans' and (P.vw & (I.vr)): n = max(n, 1)
                if pk == 'trans' and I.kind == 'trans' and (P.vw & (I.vr)): n = max(n, 1)
                if I.op in ('v_readfirstlane_b32', 'v_readlane_b32') and (P.vw & I.vr): n = max(n, 1)
                if I.op.startswith('v_permlane') and (P.vw & I.vr): n = max(n, 2)
                if '_dpp' in I.text.split()[0] or ' row_' in I.text or 'quad_perm' in I.text:
                    if P.vw & I.vr: n = max(n, 2)
                if P.op.startswith('v_dot2'):
                    if I.op == P.op:
                        srcs = I.vr - I.vw
                        if P.vw & srcs: n = max(n, 3)
                    elif P.vw & (I.vr | I.vw): n = max(n, 3)
                if P.sw:
                    if I.kind in ('valu', 'trans') and (P.sw & I.sr): n = max(n, 2)
                    if I.kind in ('vmem', 'dma') and (P.sw & I.sr): n = max(n, 5)
                    if I.kind in ('salu', 'branch', 'smem') and (P.sw & I.sr): n = max(n, 4)
                    if I.op in ('v_readlane_b32', 'v_writelane_b32') and (P.sw & I.sr): n = max(n, 4)
            if pk == 'mfma':
                big = P.passes == 8
                if I.kind == 'mfma':
                    ov_c = P.vw & I.cregs
                    if ov_c:
                        if not (I.cregs == P.vw and I.passes == P.passes): n = max(n, 10 if big else 6)
                    ab = I.vr - I.cregs
                    if P.vw & ab: n = max(n, 12 if big else 8)
                    if (P.vw & I.vw) and not (I.vw == P.vw and I.cregs == P.vw): n = max(n, 10 if big else 6)
                else:
                    if P.vw & (I.vr | I.vw): n = max(n, 12 if big else 8)
                    if I.kind in ('valu', 'trans') and (P.cregs & I.vw): n = max(n, 7 if big else 3)
            if pk == 'salu' and ('s', 'm0') in P.sw and I.kind == 'dma': n = max(n, 1)
            if pk == 'vmem' and P.wide_store and I.kind in ('valu', 'trans', 'mfma') and (P.vr & I.vw): n = max(n, 2)
            if pk == 'vmem' and P.wide_store and I.kind in ('ds', 'vmem') and (P.vr & I.vw): n = max(n, 1)
            if n > dist: req = max(req, n - dist)
        return req
    for I in seq:
        if I.kind in ('label', 'raw'):
            out.append(I); continue
        hist = []; d = 0
        for P in reversed(out):
            if P.kind == 'label' or P.kind == 'raw': continue
            hist.append((P, d))
            d += nstates(P)
            if d >= W: break
        r = required(I, hist)
        while r > 0:
            k = min(r, 16)
            out.append(Inst('s_nop %d' % (k - 1)))
            r -= k
        out.append(I)
    return out

def render(seq):
    lines = []
    for I in seq:
        if I.kind == 'label': lines.append(I.text)
        elif I.kind == 'raw': lines.append(I.text)
        else: lines.append(I.text)
    return '\n'.join(lines) + '\n'

def finalize(seq):
    return insert_nops(insert_waits(seq))

class Prog:
    def __init__(self):
        self.seq = []
    def __call__(self, text, tag=None, dummy=False):
        for line in text.split('\n'):
            line = line.split(';')[0].strip()
            if not line: continue
            if line.endswith(':'):
                self.seq.append(Label(line[:-1]))
            else:
                self.seq.append(Inst(line, tag=tag, dummy=dummy))
    def label(self, n): self.seq.append(Label(n))
    def waittags(self, *tags): self.seq.append(WaitTags(tags))
    def drain(self, vm=True, lgkm=True): self.seq.append(Drain(vm, lgkm))
    def extend(self, items): self.seq.extend(items)

def vr(base, n=1):
    return 'v%d' % base if n == 1 else 'v[%d:%d]' % (base, base + n - 1)
def ar(base, n=1):
    return 'a%d' % base if n == 1 else 'a[%d:%d]' % (base, base + n - 1)
def sr(base, n=1):
    return 's%d' % base if n == 1 else 's[%d:%d]' % (base, base + n - 1)

def kernel_text(name, body, vgpr=512, acc=256, sgpr=102):
    return f""".text
.globl {name}
.p2align 8
.type {name},@function
{name}:
{body}.section .rodata,"a"
.p2align 6
.amdhsa_kernel {name}
  .amdhsa_next_free_vgpr {vgpr}
  .amdhsa_next_free_sgpr {sgpr}
  .amdhsa_accum_offset {acc}
  .amdhsa_group_segment_fixed_size 0
  .amdhsa_kernarg_size 80
  .amdhsa_user_sgpr_count 2
  .amdhsa_user_sgpr_kernarg_segment_ptr 1
  .amdhsa_system_sgpr_workgroup_id_x 1
.end_amdhsa_kernel
"""
```

```python
from asmlib import *
from layout import *

SLOT = 20608; BOFF = 10368; NREG = 5
XR = NREG * SLOT
RG = 103168
W2S = 152192
CST = 160384
CSB = 84
STT = 161728
ONE = 162816
ZT = 163072
LDS_BYTES = 163840
HI = 131072
KVB = W2S
WOT = W2S + 2048

SX, SW0, SW1, SCS, SWS, SDB, SW2, SWO = 8, 12, 16, 20, 24, 28, 32, 36
sWave, sRB, sCG, sJ, sLW, sXL, sWO0, sWO1, sXO, sTB, sU0, sU1 = range(48, 60)
sT = 60
sCSO = 96
sM32 = 80
sEX = 82
sLOG2E, sEPS = 84, 85
sH, sNB = 86, 87
sONE, sSLO, sSHI = 93, 94, 95

vLane = 1
vWD0, vWD1, vXD, vXRd = 2, 7, 12, 16
vTR0, vTR1, vL16, vFlag = 20, 21, 22, 23
vNMean, vRstd, vC1, vK2, vC3, vCSA = 24, 25, 26, 27, 28, 29
vNonce, vBig = 30, 31
vNeed = 30
vTA, vTB, vTI = 84, 86, 88
vT = 32
ACC0, ACC1 = 96, 176
AX, AW = 0, 160
BIG = 0x7fffffff
LOG2E = 0x3fb8aa3b

def I(t, **k): return Inst(t, **k)
def L(text, **k):
    out = []
    for line in text.split('\n'):
        line = line.split(';')[0].strip()
        if line: out.append(Inst(line, **k))
    return out

class Item:
    def __init__(self, ins, earliest=0):
        self.ins = ins if isinstance(ins, list) else [ins]
        self.earliest = earliest
        self.m0grp = None
        self.uses_m0 = any(isinstance(x, Inst) and ('s', 'm0') in x.sw for x in self.ins)
def items(lst, earliest=0):
    return [Item([x], earliest) for x in lst]

class K1:
    def __init__(self, typ, stamp=False, opts=None):
        self.typ = typ
        self.stamp = stamp
        self.o = dict(quota=6, touches=True, order='DNTPR', ntouch0=3, win=4, prod_upfront=True, t_pub=50, t_w2end=30, t_poll=100, t_chk=140, t_sum=185, t_epi0=0, t_pollM=0, pace=2, backlog=9, sleep=8, barslots=(2,3,4,5,6,12), tfirst=2, tpro=6, bursts=((5, 6, 10),))
        if opts: self.o.update(opts)
        self.p = Prog()
        self.nt = {'KV': (5, 5), 'Q': (5, 4), 'F': (5, 5)}[typ]
        self.stride = {'KV': (3840, 3072), 'Q': (3840, 3072), 'F': (3072, 3072)}[typ]
        self.orient = {'KV': ('F', 'T'), 'Q': ('T', 'T'), 'F': ('T', 'T')}[typ]
        self.nstamp = 0
        self.stamp_names = []

    def st(self, name=''):
        if not self.stamp: return []
        i = self.nstamp; self.nstamp += 1
        self.stamp_names.append(name)
        assert i < 32
        return [I("s_memtime s[88:89]"), Drain(vm=False, lgkm=True), I("s_waitcnt lgkmcnt(0)"), I("s_sub_u32 s88, s88, s3"), I(f"v_writelane_b32 v92, s88, {i}")]

    def dma_w(self, s):
        g = s // 10; r = s % NREG; c = s % 10
        vw = vWD0 if g == 0 else vWD1
        srd = SW0 if g == 0 else SW1
        so = sWO0 if g == 0 else sWO1
        tag = ('W', s)
        a = [I(f"s_add_u32 m0, s{sLW}, {r*SLOT}"), I(f"s_add_u32 s74, s{so}, {c*64*self.stride[g]}")]
        for q in range(4):
            a.append(I(f"buffer_load_dwordx4 v{vw+q}, s[{srd}:{srd+3}], s74 offen offset:{q*1024} lds", tag=tag))
        b = [I(f"s_add_u32 m0, s{sLW}, {r*SLOT + 4096}"), I(f"s_add_u32 s74, s{so}, {c*64*self.stride[g]}"),
             I(f"buffer_load_dwordx4 v{vw+4}, s[{srd}:{srd+3}], s74 offen lds", tag=tag)]
        return [Item(a), Item(b)]
    def dma_x(self, j):
        tag = ('X', j)
        out = [I(f"s_add_u32 m0, s{sXL}, {(j%3)*4096}"), I(f"s_add_u32 s75, s{sXO}, {j*128}")]
        for q in range(4):
            out.append(I(f"buffer_load_dwordx4 v{vXD+q}, s[{SX}:{SX+3}], s75 offen offset:{q*1024} lds", tag=tag))
        return [Item(out)]
    def touch(self, s):
        g = s // 10
        va = vTA if g == 0 else vTB
        ins = [I(f"global_load_dword a255, v[{va}:{va+1}], off", dummy=True)]
        if s % 10 != 9:
            ins += [I(f"v_lshl_add_u64 v[{va}:{va+1}], v[{vTI+2*g}:{vTI+2*g+1}], 0, v[{va}:{va+1}]")]
        return [Item(ins)]
    def dma_w_paced(self, s):
        g = s // 10; r = s % NREG; c = s % 10
        vw = vWD0 if g == 0 else vWD1
        srd = SW0 if g == 0 else SW1
        so = sWO0 if g == 0 else sWO1
        tag = ('W', s)
        out = []
        for q in range(5):
            ins = []
            if q == 0: ins += [I(f"s_add_u32 m0, s{sLW}, {r*SLOT}"), I(f"s_add_u32 s74, s{so}, {c*64*self.stride[g]}")]
            else: ins += [I(f"s_add_u32 m0, s{sLW}, {r*SLOT + (4096 if q == 4 else 0)}"), I("s_nop 0")] if False else []
            if q == 4:
                ins += [I(f"s_add_u32 m0, s{sLW}, {r*SLOT + 4096}"), I("s_nop 0")]
                ins.append(I(f"buffer_load_dwordx4 v{vw+4}, s[{srd}:{srd+3}], s74 offen lds", tag=tag))
            else:
                ins.append(I(f"buffer_load_dwordx4 v{vw+q}, s[{srd}:{srd+3}], s74 offen offset:{q*1024} lds", tag=tag))
            it = Item(ins); it.m0grp = ('W', s, q)
            out.append(it)
        return out
    def dma_x_paced(self, j):
        tag = ('X', j)
        out = []
        for q in range(4):
            ins = []
            if q == 0: ins += [I(f"s_add_u32 m0, s{sXL}, {(j%3)*4096}"), I(f"s_add_u32 s75, s{sXO}, {j*128}")]
            ins.append(I(f"buffer_load_dwordx4 v{vXD+q}, s[{SX}:{SX+3}], s75 offen offset:{q*1024} lds", tag=tag))
            it = Item(ins); it.m0grp = ('X', j, q)
            out.append(it)
        return out
    def read_x(self, j):
        out = []
        for t in range(4):
            a = AX + (4*j + t) * 4
            out.append(I(f"ds_read_b128 a[{a}:{a+3}], v{vXRd+t} offset:{(j%3)*4096}", tag=('XR', j)))
        return out
    def trs(self, tau):
        s = tau // 4; t = tau % 4; g = s // 10; r = s % NREG
        va = vTR0 if r < 3 else vTR1
        base = (r if r < 3 else r - 3) * SLOT + t * 2560
        res = []
        for p in range(self.nt[g]):
            a = AW + ((tau % 3) * 5 + p) * 4
            o = base + p * 32
            res.append([I(f"ds_read_b64_tr_b16 a[{a}:{a+1}], v{va} offset:{o}", tag=('TR', tau)),
                        I(f"ds_read_b64_tr_b16 a[{a+2}:{a+3}], v{va} offset:{o+640}", tag=('TR', tau))])
        return res
    def mfma(self, tau, p):
        g = tau // 40; k = tau % 40
        acc = (ACC0 if g == 0 else ACC1) + p * 16
        w = AW + ((tau % 3) * 5 + p) * 4
        x = AX + k * 4
        c = f"v[{acc}:{acc+15}]" if k > 0 else "0"
        if self.orient[g] == 'T':
            return I(f"v_mfma_f32_32x32x16_bf16 v[{acc}:{acc+15}], a[{w}:{w+3}], a[{x}:{x+3}], {c}")
        return I(f"v_mfma_f32_32x32x16_bf16 v[{acc}:{acc+15}], a[{x}:{x+3}], a[{w}:{w+3}], {c}")

    def emit(self, its):
        for it in its: self.p.extend(it.ins)

    def prologue_common(self):
        p = self.p
        typ = self.typ
        o = self.o
        p(f"v_and_b32 v{vLane}, 63, v0\nv_lshrrev_b32 v{vT}, 6, v0")
        p(f"v_readfirstlane_b32 s{sWave}, v{vT}")
        T = vT
        def wd(dst, stride):
            p(f"""v_mul_u32_u24 v{T+1}, 6554, v{vLane}
v_lshrrev_b32 v{T+1}, 16, v{T+1}
v_mul_u32_u24 v{T+2}, 10, v{T+1}
v_sub_u32 v{T+2}, v{vLane}, v{T+2}""")
            for q in range(5):
                p(f"""v_mul_u32_u24 v{T+3}, {stride}, v{T+1}
v_lshl_add_u32 v{dst+q}, v{T+2}, 4, v{T+3}""")
                if q in (1, 2, 3):
                    p(f"v_subrev_u32 v{dst+q}, {1024*q}, v{dst+q}")
                if q < 4:
                    p(f"""v_add_u32 v{T+2}, 4, v{T+2}
v_cmp_lt_u32 vcc, 9, v{T+2}
v_addc_co_u32 v{T+1}, vcc, 6, v{T+1}, vcc
v_cmp_lt_u32 vcc, 9, v{T+2}
v_subrev_u32 v{T+4}, 10, v{T+2}
v_cndmask_b32 v{T+2}, v{T+2}, v{T+4}, vcc""")
        p(f"""v_lshrrev_b32 v{T}, 3, v{vLane}
v_lshrrev_b32 v{T+1}, 1, v{T}
v_and_b32 v{T+2}, 7, v{vLane}
v_xor_b32 v{T+2}, v{T+2}, v{T+1}
v_mul_u32_u24 v{T}, 1280, v{T}
v_lshl_add_u32 v{vXD}, v{T+2}, 4, v{T}
v_xor_b32 v{T}, 64, v{vXD}
v_add_u32 v{vXD+1}, {9216}, v{T}
v_add_u32 v{vXD+2}, {2*9216}, v{vXD}
v_add_u32 v{vXD+3}, {3*9216}, v{T}""")
        p(f"""s_and_b32 s{sT}, s2, 7
s_lshr_b32 s{sT+1}, s2, 3
s_and_b32 s{sRB}, s{sT}, 1
s_lshl_b32 s{sRB}, s{sRB}, 3
s_and_b32 s{sT+2}, s{sT+1}, 7
s_add_u32 s{sRB}, s{sRB}, s{sT+2}
s_lshr_b32 s{sCG}, s{sT}, 1
s_lshl_b32 s{sCG}, s{sCG}, 2
s_lshr_b32 s{sT+3}, s{sT+1}, 3
s_add_u32 s{sCG}, s{sCG}, s{sT+3}""")
        p(f"""s_mul_i32 s{sXL}, s{sWave}, 12288
s_add_u32 s{sXL}, s{sXL}, {XR}
s_mul_i32 s{sXO}, s{sWave}, {32*1280}
s_lshr_b32 s{sT}, s{sWave}, 1
s_mul_i32 s{sLW}, s{sT}, {BOFF}
s_and_b32 s{sT+1}, s{sWave}, 1
s_mul_i32 s{sT+2}, s{sT+1}, 5120
s_add_u32 s{sLW}, s{sLW}, s{sT+2}
s_mul_i32 s{sWO0}, s{sT+1}, {32*self.stride[0]}
s_mul_i32 s{sWO1}, s{sT+1}, {32*self.stride[1]}""")
        if typ == 'KV':
            p(f"""s_lshr_b32 s{sJ}, s{sCG}, 2
s_lshl_b32 s{sJ}, s{sJ}, 1
s_and_b32 s{sT}, s{sCG}, 1
s_add_u32 s{sJ}, s{sJ}, s{sT}
s_mul_i32 s{sT}, s{sJ}, 160
s_add_u32 s64, s{sT}, 1280
s_add_u32 s65, s{sT}, 2560
s_mov_b32 s66, s{sT}
s_mov_b32 s67, s{sT}
s_mul_i32 s{sU1}, s{sJ}, 5120
s_mov_b32 s{sU0}, 0""")
            PA0 = PB0 = (6, 7); PA1 = (40, 41); PB1 = (42, 43)
            N0 = 640*1920*2; N1 = 640*1536*2
        elif typ == 'Q':
            p(f"""s_lshr_b32 s{sJ}, s{sCG}, 2
s_mul_i32 s64, s{sJ}, 320
s_add_u32 s65, s64, 160
s_lshl_b32 s66, s{sJ}, 7
s_add_u32 s66, s66, 2560
s_mov_b32 s67, s66
s_mul_i32 s{sU0}, s{sJ}, 10240
s_add_u32 s{sU0}, s{sU0}, {96*1024}
s_lshl_b32 s{sU1}, s{sJ}, 12
s_add_u32 s{sU1}, s{sU1}, {80*1024}""")
            PA0 = PB0 = (6, 7); PA1 = (40, 41); PB1 = (42, 43)
            N0 = 640*1920*2; N1 = 640*1536*2
        else:
            p(f"""s_lshr_b32 s{sJ}, s{sCG}, 2
s_mul_i32 s64, s{sJ}, 320
s_add_u32 s64, s64, 1280
s_mov_b32 s65, s64
s_add_u32 s66, s64, 160
s_mov_b32 s67, s66
s_mul_i32 s{sU0}, s{sJ}, 10240
s_add_u32 s{sU0}, s{sU0}, {40*1024}
s_add_u32 s{sU1}, s{sU0}, 5120""")
            PA0 = PA1 = (40, 41); PB0 = PB1 = (42, 43)
            N0 = N1 = 640*1536*2
        wd(vWD0, self.stride[0])
        p("s_waitcnt lgkmcnt(0)")
        def mk(dst, PA, PB, ca, cb, N, cond):
            p(cond)
            p(f"""s_cselect_b32 s{sT}, s{PA[0]}, s{PB[0]}
s_cselect_b32 s{sT+1}, s{PA[1]}, s{PB[1]}
s_cselect_b32 s{sT+2}, s{ca}, s{cb}
s_add_u32 s{dst}, s{sT}, s{sT+2}
s_addc_u32 s{dst+1}, s{sT+1}, 0
s_sub_u32 s{dst+2}, {N}, s{sT+2}
s_mov_b32 s{dst+3}, 0x20000""")
        p(f"""s_mul_i32 s{sT}, s{sRB}, {128*1280}
s_add_u32 s{SX}, s4, s{sT}
s_addc_u32 s{SX+1}, s5, 0
s_mov_b32 s{SX+2}, {128*1280}
s_mov_b32 s{SX+3}, 0x20000""")
        def nonce():
            p(f"""s_mov_b32 s{SDB}, s46
s_mov_b32 s{SDB+1}, s47
s_mov_b32 s{SDB+2}, 256
s_mov_b32 s{SDB+3}, 0x20000
s_memrealtime s[98:99]
s_or_b32 s{sT}, s2, s{sWave}
s_cmp_eq_u32 s{sT}, 0
s_cselect_b32 s{sT}, 0, {BIG}
v_mov_b32 v{T}, s{sT}
v_mov_b32 v{vBig}, {BIG}
v_cmp_eq_u32 vcc, 0, v{vLane}
v_cndmask_b32 v{T}, v{vBig}, v{T}, vcc""")
            p.seq.append(Drain(vm=False, lgkm=True))
            p(f"""s_waitcnt lgkmcnt(0)
s_or_b32 s98, s98, 1
v_mov_b32 v{T+1}, s98
buffer_store_dword v{T+1}, v{T}, s[{SDB}:{SDB+3}], 0 offen sc1
s_mov_b32 s{SWS}, s44
s_mov_b32 s{SWS+1}, s45
s_mov_b32 s{SWS+2}, {WS_END}
s_mov_b32 s{SWS+3}, 0x20000
s_mov_b32 s{sT}, {WS_NONCE}
buffer_store_dword v{T+1}, v{T}, s[{SWS}:{SWS+3}], s{sT} offen""")
        def nonce_read():
            p(f"v_mov_b32 v{T}, 0\nbuffer_load_dword v{vNonce}, v{T}, s[{SDB}:{SDB+3}], 0 offen")
        def touch_setup():
            smax = [2 if self.nt[g] == 5 else 1 for g in range(2)]
            p(f"""v_lshrrev_b32 v{T}, 1, v{vLane}
s_lshr_b32 s{sT}, s2, 6
s_lshl_b32 s{sT}, s{sT}, 5
s_lshl_b32 s{sT+1}, s{sWave}, 3
s_add_u32 s{sT}, s{sT}, s{sT+1}
v_add_u32 v{T}, s{sT}, v{T}
v_mul_u32_u24 v{T}, 1280, v{T}
v_and_b32 v{T+1}, 1, v{vLane}
v_lshl_add_u32 v{T}, v{T+1}, 6, v{T}
v_subrev_u32 v{T+1}, 16, v{vLane}
v_cmp_gt_u32 vcc, 12, v{T+1}
v_cndmask_b32 v{T+1}, 0, v{T+1}, vcc
v_mul_u32_u24 v{T+2}, 21846, v{T+1}
v_lshrrev_b32 v{T+2}, 16, v{T+2}
v_mul_u32_u24 v{T+3}, 3, v{T+2}
v_sub_u32 v{T+3}, v{T+1}, v{T+3}
s_lshr_b32 s{sT}, s2, 3
s_and_b32 s{sT}, s{sT}, 7
s_lshl_b32 s{sT}, s{sT}, 3
s_and_b32 s{sT+1}, s{sWave}, 1
s_lshl_b32 s{sT+1}, s{sT+1}, 2
s_add_u32 s{sT}, s{sT}, s{sT+1}
v_add_u32 v{T+2}, s{sT}, v{T+2}
v_cmp_gt_u32 s[{sEX}:{sEX+1}], 16, v{vLane}""")
            for g, srd, va in ((0, SW0, vTA), (1, SW1, vTB)):
                p(f"""v_min_u32 v{T+4}, {smax[g]}, v{T+3}
v_mul_u32_u24 v{T+5}, {self.stride[g]}, v{T+2}
v_lshl_add_u32 v{T+5}, v{T+4}, 6, v{T+5}
v_mov_b32 v{T+6}, s{srd}
v_mov_b32 v{T+7}, s{srd+1}
v_mov_b32 v{vTI+2*g}, {64*self.stride[g]}
v_mov_b32 v{vTI+2*g+1}, 0""")
                if g == 0:
                    p(f"""v_mov_b32 v{T+8}, s{SX}
v_mov_b32 v{T+9}, s{SX+1}
v_cndmask_b32 v{T+5}, v{T+5}, v{T}, s[{sEX}:{sEX+1}]
v_cndmask_b32 v{T+6}, v{T+6}, v{T+8}, s[{sEX}:{sEX+1}]
v_cndmask_b32 v{T+7}, v{T+7}, v{T+9}, s[{sEX}:{sEX+1}]
v_mov_b32 v{T+8}, 128
v_cndmask_b32 v{vTI}, v{vTI}, v{T+8}, s[{sEX}:{sEX+1}]""")
                p(f"""v_add_co_u32 v{va}, vcc, v{T+5}, v{T+6}
v_addc_co_u32 v{va+1}, vcc, 0, v{T+7}, vcc""")
        def first_dma():
            self.emit(self.dma_x(0))
            self.emit(self.dma_w(0))
        def prod_loads():
            p(f"""v_lshrrev_b32 v{T}, 5, v{vLane}
s_lshl_b32 s{sT}, s{sCG}, 3
s_lshl_b32 s{sT+1}, s{sWave}, 1
s_add_u32 s{sT}, s{sT}, s{sT+1}
v_add_u32 v{T}, s{sT}, v{T}
v_mul_u32_u24 v{T+1}, 1280, v{T}
v_and_b32 v{T+2}, 31, v{vLane}
v_lshl_add_u32 v{T+1}, v{T+2}, 3, v{T+1}""")
            for n in range(5):
                p(f"buffer_load_dwordx2 v[{ACC1+2*n}:{ACC1+2*n+1}], v{T+1}, s[{SX}:{SX+3}], 0 offen offset:{256*n}")
            p(f"""s_and_b32 s{sT+3}, s{sWave}, 1
s_cmp_eq_u32 s{sT+3}, 0
s_cselect_b32 s68, s{PA0[0]}, s{PB0[0]}
s_cselect_b32 s69, s{PA0[1]}, s{PB0[1]}
s_cselect_b32 s70, s64, s65
s_cselect_b32 s71, s{PA1[0]}, s{PB1[0]}
s_cselect_b32 s72, s{PA1[1]}, s{PB1[1]}
s_cselect_b32 s73, s66, s67
s_cmp_lt_u32 s{sWave}, 2
s_cselect_b32 s68, s68, s71
s_cselect_b32 s69, s69, s72
s_cselect_b32 s70, s70, s73
s_mov_b32 s73, {N1}
s_cselect_b32 s71, {N0}, s73
s_mov_b32 s73, {self.stride[1]}
s_cselect_b32 s72, {self.stride[0]}, s73
s_add_u32 s{SCS}, s68, s70
s_addc_u32 s{SCS+1}, s69, 0
s_sub_u32 s{SCS+2}, s71, s70
s_mov_b32 s{SCS+3}, 0x20000
v_mov_b32 v{vBig}, {BIG}
v_and_b32 v{T+4}, 15, v{vLane}
v_lshrrev_b32 v{T+5}, 4, v{vLane}
s_mul_i32 s{sT}, s72, 10
v_mul_lo_u32 v{T+5}, s{sT}, v{T+5}
v_lshl_add_u32 v{T+5}, v{T+4}, 4, v{T+5}
v_cmp_gt_u32 vcc, 10, v{T+4}
v_cndmask_b32 v{T+5}, v{vBig}, v{T+5}, vcc
s_mul_i32 s{sCSO}, s{sRB}, 40
s_mul_i32 s{sCSO}, s{sCSO}, s72""")
            for n in range(10):
                r = 188 + 4*n
                p(f"buffer_load_dwordx4 v[{r}:{r+3}], v{T+5}, s[{SCS}:{SCS+3}], s{sCSO} offen")
                if n < 9: p(f"s_add_u32 s{sCSO}, s{sCSO}, s72")
            p(f"""s_lshl_b32 s{sT}, s{sRB}, 4
s_add_u32 s{sT}, s{sT}, s{sCG}
s_lshl_b32 s{sT}, s{sT}, 2
s_add_u32 s{sT}, s{sT}, s{sWave}
s_lshl_b32 s{sT}, s{sT}, 7
s_add_u32 s{sT}, s{sT}, {WS_ST}
v_lshlrev_b32 v{T+2}, 4, v{vLane}
v_add_u32 v{T}, s{sT}, v{T+2}
v_cmp_gt_u32 vcc, 8, v{vLane}
v_cndmask_b32 v95, v{vBig}, v{T}, vcc
s_lshl_b32 s{sT}, s{sCG}, 4
s_add_u32 s{sT}, s{sT}, s{sRB}
s_lshl_b32 s{sT}, s{sT}, 2
s_add_u32 s{sT}, s{sT}, s{sWave}
s_lshl_b32 s{sT}, s{sT}, 9
s_add_u32 s{sT}, s{sT}, {WS_CS}
v_add_u32 v{T+2}, s{sT}, v{T+2}
v_cmp_gt_u32 vcc, 32, v{vLane}
v_cndmask_b32 v94, v{vBig}, v{T+2}, vcc""")
        mk(SW0, PA0, PB0, 64, 65, N0, f"s_cmp_lt_u32 s{sWave}, 2")
        mk(SW1, PA1, PB1, 66, 67, N1, f"s_cmp_lt_u32 s{sWave}, 2")
        for what in o['order']:
            if what == 'N': nonce()
            elif what == 'R': nonce_read()
            elif what == 'T':
                if o['touches']:
                    touch_setup()
                    if o.get('burst'):
                        for c in range(o['tfirst']):
                            self.emit([Item(self.touch(c)[0].ins[1:])])
                    else:
                        for c in range(o['ntouch0']): self.emit(self.touch(c))
            elif what == 'P': prod_loads()
            elif what == 'D': first_dma()
        p.extend(self.st('dma0'))
        p(f"""s_mov_b32 s{SWS}, s44
s_mov_b32 s{SWS+1}, s45
s_mov_b32 s{SWS+2}, {WS_END}
s_mov_b32 s{SWS+3}, 0x20000
s_mov_b32 s{SW2}, s76
s_mov_b32 s{SW2+1}, s77
s_mov_b32 s{SW2+2}, {1536*640*2}
s_mov_b32 s{SW2+3}, 0x20000
s_mov_b32 s{SWO}, s78
s_mov_b32 s{SWO+1}, s79
s_mov_b32 s{SWO+2}, {640*640*2}
s_mov_b32 s{SWO+3}, 0x20000
s_mov_b32 s{sLOG2E}, {LOG2E}
s_mov_b32 s{sEPS}, 0x358637bd
s_mov_b32 s{sONE}, 0x3f803f80
s_mov_b32 s{sSLO}, 0x00003f80
s_mov_b32 s{sSHI}, 0x3f800000
s_lshl_b32 s{sTB}, s{sRB}, 2
s_add_u32 s{sTB}, s{sTB}, s{sWave}
s_mul_i32 s{sTB}, s{sTB}, {A_TB}
s_mov_b32 s{sM32}, 0
s_mov_b32 s{sM32+1}, -1""")
        wd(vWD1, self.stride[1])
        p(f"""v_and_b32 v{T}, 31, v{vLane}
v_lshrrev_b32 v{T+1}, 5, v{vLane}
v_lshrrev_b32 v{T+2}, 1, v{T}
v_and_b32 v{T+2}, 7, v{T+2}
v_xor_b32 v{T+2}, v{T+2}, v{T+1}
v_lshlrev_b32 v{T+2}, 4, v{T+2}
v_lshl_add_u32 v{T+3}, v{T}, 7, v{T+2}
v_add_u32 v{vXRd}, s{sXL}, v{T+3}""")
        for t in range(1, 4):
            p(f"v_xor_b32 v{vXRd+t}, {t<<5}, v{vXRd}")
        p(f"""v_and_b32 v{T}, 15, v{vLane}
v_lshrrev_b32 v{T+2}, 2, v{T}
v_lshl_add_u32 v{T+2}, v{T+1}, 3, v{T+2}
v_mul_u32_u24 v{T+2}, 160, v{T+2}
v_bfe_u32 v{T+3}, v{vLane}, 4, 1
v_mul_u32_u24 v{T+3}, {BOFF}, v{T+3}
v_and_b32 v{T+4}, 3, v{vLane}
v_lshlrev_b32 v{T+4}, 3, v{T+4}
v_add3_u32 v{vTR0}, v{T+2}, v{T+3}, v{T+4}
v_add_u32 v{vTR1}, {3*SLOT}, v{vTR0}
v_lshlrev_b32 v{vL16}, 4, v{vLane}
v_lshlrev_b32 v{vCSA}, 4, v{T+1}
v_add_u32 v{vCSA}, {HI}, v{vCSA}""")
        p(f"""s_lshl_b32 s{sT}, s{sRB}, 4
s_add_u32 s{sT}, s{sT}, s{sCG}
s_cmp_eq_u32 s{sWave}, 0
s_cselect_b32 s{sT}, s{sT}, {BIG}
v_mov_b32 v{T}, s{sT}
v_cmp_eq_u32 vcc, 0, v{vLane}
v_cndmask_b32 v{vFlag}, v{vBig}, v{T}, vcc""")
        p(f"""v_mov_b32 v{T}, 0x3f803f80
v_lshlrev_b32 v{T+1}, 2, v{vLane}
v_add_u32 v{T+1}, {HI}, v{T+1}
ds_write_b32 v{T+1}, v{T} offset:{ONE-HI}""")
        p.extend(self.st('addr'))
        if o['prod_upfront']:
            self.emit(self.job_stats(True)); self.emit(self.job_colsum(True))
            p.extend(self.st('prod'))
        self.emit(self.dma_x(1)); self.emit(self.dma_w(1))
        if o['touches'] and o.get('burst'):
            for c in range(o['tfirst'], o['tpro']): self.emit(self.touch(c))

    _nn = 0
    def nonce_check(self):
        K1._nn += 1
        n = f"{self.typ}{K1._nn}"
        T = vT + 6
        out = [I(f"v_cmp_eq_u32 vcc, 0, v{vNonce}"), SaveState(), I(f"s_cbranch_vccz NOK{n}"), I(f"s_mov_b32 s{sT+8}, 4000"), I(f"v_mov_b32 v{T}, 0"),
               Label(f"NSP{n}"), I("s_sleep 8"), I(f"buffer_load_dword v{vNonce}, v{T}, s[{SDB}:{SDB+3}], 0 offen sc1"), Drain(vm=True, lgkm=False),
               I(f"v_cmp_eq_u32 vcc, 0, v{vNonce}"), I(f"s_sub_u32 s{sT+8}, s{sT+8}, 1"), I(f"s_cbranch_vccz NOK{n}"),
               I(f"s_cmp_lg_u32 s{sT+8}, 0"), I(f"s_cbranch_scc1 NSP{n}"), Label(f"NOK{n}"), RestoreState()]
        return [Item(out)]
    def job_stats(self, dot=False):
        a = ACC1
        t = vT
        out = []
        if dot:
            out += L(f"v_mov_b32 v{t}, 0\nv_mov_b32 v{t+2}, 0")
            for n in range(10):
                out += L(f"v_dot2c_f32_bf16 v{t}, s{sONE}, v{a+n}\nv_dot2c_f32_bf16 v{t+2}, v{a+n}, v{a+n}")
        else:
            out += L(f"v_mov_b32 v{t}, 0\nv_mov_b32 v{t+1}, 0\nv_mov_b32 v{t+2}, 0\nv_mov_b32 v{t+3}, 0")
            for n in range(10):
                out += L(f"""v_lshlrev_b32 v{t+4}, 16, v{a+n}
v_and_b32 v{t+5}, 0xffff0000, v{a+n}
v_add_f32 v{t}, v{t}, v{t+4}
v_add_f32 v{t+1}, v{t+1}, v{t+5}
v_fmac_f32 v{t+2}, v{t+4}, v{t+4}
v_fmac_f32 v{t+3}, v{t+5}, v{t+5}""")
            out += L(f"v_add_f32 v{t}, v{t}, v{t+1}\nv_add_f32 v{t+2}, v{t+2}, v{t+3}")
        for k, ror in enumerate((8, 4, 2, 1)):
            s0, d0 = (t, t+1) if k % 2 == 0 else (t+1, t)
            out += L(f"""v_add_f32_dpp v{d0}, v{s0}, v{s0} row_ror:{ror} row_mask:0xf bank_mask:0xf
v_add_f32_dpp v{d0+2}, v{s0+2}, v{s0+2} row_ror:{ror} row_mask:0xf bank_mask:0xf""")
        out += L(f"""v_mov_b32 v{t+1}, v{t}
v_mov_b32 v{t+3}, v{t+2}
v_permlane16_swap_b32 v{t}, v{t+1}
v_permlane16_swap_b32 v{t+2}, v{t+3}
v_add_f32 v{t}, v{t}, v{t+1}
v_add_f32 v{t+2}, v{t+2}, v{t+3}
v_mul_f32 v{t}, 0x3acccccd, v{t}
v_mul_f32 v{t+2}, 0x3acccccd, v{t+2}
v_fma_f32 v{t+2}, -v{t}, v{t}, v{t+2}
v_max_f32 v{t+2}, 0, v{t+2}
v_add_f32 v{t+2}, 0x3727c5ac, v{t+2}
v_rsq_f32 v{t+1}, v{t+2}""")
        out += L(f"""v_mov_b32 v{t+2}, v{t}
v_mov_b32 v{t+3}, v{t+1}
v_mov_b32 v{t+4}, v{t}
v_mov_b32 v{t+5}, v{t+1}
v_and_b32 v{t+6}, 1, v{vLane}
v_permlane32_swap_b32 v{t+4}, v{t+2}
v_permlane32_swap_b32 v{t+5}, v{t+3}""")
        its = items(out)
        its.append(Item(L(f"""v_cmp_eq_u32 vcc, 1, v{t+6}
s_nop 1
v_cndmask_b32 v{t}, v{t}, v{t+2}, vcc
v_cndmask_b32 v{t+1}, v{t+1}, v{t+3}, vcc""")))
        its += self.nonce_check()
        its += items(L(f"v_mov_b32 v{t+2}, v{vNonce}\nv_mov_b32 v{t+3}, v{vNonce}"))
        its.append(Item([I(f"buffer_store_dwordx4 v[{t}:{t+3}], v95, s[{SWS}:{SWS+3}], 0 offen sc1", tag='PUB1')]))
        return its

    def job_colsum(self, dot=False):
        a = 188; c = 228
        out = []
        if dot:
            for j in range(8): out += L(f"v_mov_b32 v{c+j}, 0")
            for n in range(10):
                for j in range(4):
                    r = a + 4*n + j
                    out += L(f"v_dot2c_f32_bf16 v{c+2*j}, s{sSLO}, v{r}\nv_dot2c_f32_bf16 v{c+2*j+1}, s{sSHI}, v{r}")
        else:
            for n in range(10):
                for j in range(4):
                    r = a + 4*n + j
                    if n == 0:
                        out += L(f"v_lshlrev_b32 v{c+2*j}, 16, v{r}\nv_and_b32 v{c+2*j+1}, 0xffff0000, v{r}")
                    else:
                        tt = 236 + 2*(j % 4)
                        out += L(f"""v_lshlrev_b32 v{tt}, 16, v{r}
v_and_b32 v{tt+1}, 0xffff0000, v{r}
v_add_f32 v{c+2*j}, v{c+2*j}, v{tt}
v_add_f32 v{c+2*j+1}, v{c+2*j+1}, v{tt+1}""")
        for sw in ('v_permlane16_swap_b32', 'v_permlane32_swap_b32'):
            for j in range(8): out += L(f"v_mov_b32 v{236+j}, v{c+j}")
            for j in range(8): out += L(f"{sw} v{c+j}, v{236+j}")
            for j in range(8): out += L(f"v_add_f32 v{c+j}, v{c+j}, v{236+j}")
        its = items(out)
        its.append(Item(L(f"""s_lshl_b32 s{sT}, s{sWave}, 11
s_add_u32 s{sT}, s{sT}, {W2S}
v_lshlrev_b32 v236, 5, v{vLane}
v_add_u32 v236, s{sT}, v236
v_mul_u32_u24 v237, 12, v{vLane}
v_add_u32 v237, s{sT}, v237
s_mov_b64 s[{sEX}:{sEX+1}], exec
s_mov_b64 exec, 0xffff
ds_write_b128 v236, v[{c}:{c+3}]
ds_write_b128 v236, v[{c+4}:{c+7}] offset:16
s_mov_b64 exec, s[{sEX}:{sEX+1}]""")))
        its.append(Item([Drain(vm=False, lgkm=True)] + L(f"""ds_read_b32 v240, v237
ds_read_b32 v241, v237 offset:4
ds_read_b32 v242, v237 offset:8""")))
        its += items(L(f"v_mov_b32 v243, v{vNonce}"))
        its.append(Item([I(f"buffer_store_dwordx4 v[240:243], v94, s[{SWS}:{SWS+3}], 0 offen sc1", tag='PUB1')]))
        return its

    def job_w2t_load(self):
        T = vT + 8
        out = L(f"""s_mul_i32 s{sT}, s2, 52429
s_lshr_b32 s{sT}, s{sT}, 18
s_mul_i32 s{sT+1}, s{sT}, 5
s_sub_u32 s{sT+1}, s2, s{sT+1}
s_mul_i32 s{sT+2}, s{sT}, {32*1280}
s_lshl_b32 s{sT+3}, s{sT+1}, 8
s_add_u32 s{sT+2}, s{sT+2}, s{sT+3}
s_mul_i32 s{sT+3}, s{sWave}, {8*1280}
s_add_u32 s{sT+2}, s{sT+2}, s{sT+3}
v_lshrrev_b32 v{T}, 4, v{vLane}
v_mul_u32_u24 v{T}, 1280, v{T}
v_and_b32 v{T+1}, 15, v{vLane}
v_lshlrev_b32 v{T+1}, 4, v{T+1}
v_add_u32 v{T}, v{T}, v{T+1}
v_add_u32 v{T+1}, {4*1280 - 1024}, v{T}
s_lshl_b32 s{sT+3}, s{sWave}, 11
s_add_u32 m0, s{sT+3}, {W2S}""")
        out.append(I(f"buffer_load_dwordx4 v{T}, s[{SW2}:{SW2+3}], s{sT+2} offen lds", tag='W2L'))
        out.append(I(f"buffer_load_dwordx4 v{T+1}, s[{SW2}:{SW2+3}], s{sT+2} offen offset:1024 lds", tag='W2L'))
        out += L(f"s_mov_b32 s97, s{sT}\ns_mov_b32 s98, s{sT+1}")
        return [Item(out)]
    def job_w2t_store(self):
        T = vT + 8
        out = []
        out += L(f"""v_lshrrev_b32 v{T}, 5, v{vLane}
v_lshlrev_b32 v{T}, 4, v{T}
v_lshrrev_b32 v{T+1}, 4, v{vLane}
v_and_b32 v{T+1}, 1, v{T+1}
v_lshlrev_b32 v{T+1}, 2, v{T+1}
v_and_b32 v{T+2}, 15, v{vLane}
v_lshrrev_b32 v{T+2}, 2, v{T+2}
v_add3_u32 v{T}, v{T}, v{T+1}, v{T+2}
v_lshlrev_b32 v{T}, 8, v{T}
v_and_b32 v{T+1}, 3, v{vLane}
v_lshlrev_b32 v{T+1}, 3, v{T+1}
s_lshl_b32 s{sT}, s{sWave}, 6
s_add_u32 s{sT}, s{sT}, {W2S}
v_add3_u32 v{T}, v{T}, v{T+1}, s{sT}""")
        for a in range(2):
            r = T + 4 + 4*a
            out.append(Item(L(f"ds_read_b64_tr_b16 v[{r}:{r+1}], v{T} offset:{a*32}\nds_read_b64_tr_b16 v[{r+2}:{r+3}], v{T} offset:{a*32 + 8*256}")))
        res = []
        for x in out: res.append(x if isinstance(x, Item) else Item([x]))
        for a in range(2):
            r = T + 4 + 4*a
            ins = L(f"""s_lshl_b32 s{sT}, s98, 3
s_lshl_b32 s{sT+1}, s{sWave}, 1
s_add_u32 s{sT}, s{sT}, s{sT+1}
s_add_u32 s{sT}, s{sT}, {a}
s_mul_i32 s{sT+1}, s{sT}, 52429
s_lshr_b32 s{sT+1}, s{sT+1}, 18
s_mul_i32 s{sT+2}, s{sT+1}, 5
s_sub_u32 s{sT+2}, s{sT}, s{sT+2}
s_mul_i32 s{sT+1}, s{sT+1}, 48
s_add_u32 s{sT+1}, s{sT+1}, s97
s_mul_i32 s{sT+1}, s{sT+1}, 5
s_add_u32 s{sT+1}, s{sT+1}, s{sT+2}
s_lshl_b32 s{sT+1}, s{sT+1}, 10
s_add_u32 s{sT+1}, s{sT+1}, {WS_B}
s_cmp_lt_u32 s2, 240
s_cselect_b32 s{sT+1}, s{sT+1}, {WS_END}""")
            ins.append(I(f"buffer_store_dwordx4 v[{r}:{r+3}], v{vL16}, s[{SWS}:{SWS+3}], s{sT+1} offen", tag='OUT'))
            res.append(Item(ins))
        return res

    def flag_store(self, stage):
        return Item(L(f"v_mov_b32 v{vT+30}, {stage}") + [I(f"buffer_store_byte v{vT+30}, v{vFlag}, s[{SDB}:{SDB+3}], 0 offen sc1")])

    _npoll = 0
    def poll(self, need_setup):
        K1._npoll += 1
        n = f"{self.typ}{K1._npoll}"
        T = vT + 2
        ins = list(need_setup)
        ins += L(f"""s_cmp_eq_u32 s{sWave}, 0
s_cselect_b32 s{sT+9}, 0, {BIG}""")
        ins = ins[:-2] + [Item(ins[-2:])] if False else ins
        pre = L(f"v_lshlrev_b32 v{T}, 2, v{vLane}")
        ld = L(f"s_cmp_eq_u32 s{sWave}, 0\ns_cselect_b32 s{sT+9}, 0, {BIG}") + [I(f"buffer_load_dword v{T+1}, v{T}, s[{SDB}:{SDB+3}], s{sT+9} offen sc1")]
        chk = lambda: L(f"""v_or_b32 v{T+1}, 0x80808080, v{T+1}
v_sub_u32 v{T+1}, v{T+1}, v{vNeed}
v_and_b32 v{T+1}, 0x80808080, v{T+1}
v_cmp_ne_u32 vcc, 0x80808080, v{T+1}""")
        return items(list(need_setup) + pre) + [Item(ld)], chk, n, T

    def emit_poll_check(self, chk, n, T):
        ins = [I(f"s_cmp_lg_u32 s{sWave}, 0"), I(f"s_cbranch_scc1 POK{n}")]
        ins += chk()
        ins += [I(f"s_cbranch_vccz POK{n}"), I(f"s_mov_b32 s{sT+8}, 4000"), Label(f"PSP{n}"), I(f"s_sleep {self.o['sleep']}"),
                I(f"buffer_load_dword v{T+1}, v{T}, s[{SDB}:{SDB+3}], 0 offen sc1"), Drain(vm=True, lgkm=False)]
        ins += chk()
        ins += [I(f"s_sub_u32 s{sT+8}, s{sT+8}, 1"), I(f"s_cbranch_vccz POK{n}"), I(f"s_cmp_lg_u32 s{sT+8}, 0"),
                I(f"s_cbranch_scc1 PSP{n}"), Label(f"POK{n}")]
        return ins

    def need_stage(self, cond_setup):
        return cond_setup

    def job_consume1_issue(self):
        T = vT + 6
        setup = L(f"""v_lshrrev_b32 v{T}, 2, v{vLane}
v_mov_b32 v{T+1}, 0x01010101
v_cmp_eq_u32 vcc, s{sRB}, v{T}
v_cndmask_b32 v{vNeed}, 0, v{T+1}, vcc
s_and_b32 s{sT}, s{sCG}, 3
s_lshl_b32 s{sT}, s{sT}, 3
s_lshl_b32 s{sT}, 1, s{sT}
s_lshr_b32 s{sT+1}, s{sCG}, 2
v_and_b32 v{T}, 3, v{vLane}
v_mov_b32 v{T+1}, s{sT}
v_cmp_eq_u32 vcc, s{sT+1}, v{T}
v_cndmask_b32 v{T+1}, 0, v{T+1}, vcc
v_or_b32 v{vNeed}, v{vNeed}, v{T+1}""")
        its, chk, n, TT = self.poll(setup)
        self._poll1 = (chk, n, TT)
        return its
    def poll_check_item(self, pl):
        chk, n, TT = pl
        ins = self.emit_poll_check(chk, n, TT)
        out = [I(f"v_mov_b32 v{TT+1}, v{TT+1}"), SaveState()]
        out += ins
        out.append(RestoreState())
        out.append(I("s_barrier"))
        return Item(out)

    def c1_loads_ins(self):
        T = vT + 4
        CL = vT + 16
        SG = vT + 12
        out = [I(f"buffer_load_dwordx4 v[{SG}:{SG+3}], v{T}, s[{SWS}:{SWS+3}], s47 offen sc1")]
        for r in range(8):
            va = T + 1 + (r >> 1)
            out.append(I(f"buffer_load_dwordx4 v[{CL+4*r}:{CL+4*r+3}], v{va}, s[{SWS}:{SWS+3}], s46 offen offset:{(r&1)*2048} sc1"))
        return out
    def job_consume1_loads(self):
        T = vT + 4
        out = L(f"""v_and_b32 v{T}, 31, v{vLane}
v_lshrrev_b32 v{T+1}, 1, v{T}
v_lshlrev_b32 v{T+1}, 7, v{T+1}
v_and_b32 v{T+2}, 1, v{T}
v_lshl_add_u32 v{T+5}, v{T+2}, 4, v{T+1}
s_lshl_b32 s47, s{sRB}, 2
s_add_u32 s47, s47, s{sWave}
s_lshl_b32 s47, s47, 11
s_add_u32 s47, s47, {WS_ST}
s_lshl_b32 s46, s{sCG}, 15
s_lshl_b32 s{sT}, s{sWave}, 9
s_add_u32 s46, s46, s{sT}
s_add_u32 s46, s46, {WS_CS}
v_lshrrev_b32 v{T+1}, 5, v{vLane}
v_lshlrev_b32 v{T+1}, 14, v{T+1}
v_lshl_add_u32 v{T+1}, v{T}, 4, v{T+1}
v_add_u32 v{T+2}, 4096, v{T+1}
v_add_u32 v{T+3}, 8192, v{T+1}
v_add_u32 v{T+4}, 12288, v{T+1}
v_mov_b32 v{T}, v{T+5}""")
        its = items(out)
        its += [Item([x]) for x in self.c1_loads_ins()]
        return its
    _nc = 0
    def job_consume1_check(self):
        K1._nc += 1
        n = f"{self.typ}{K1._nc}"
        CL = vT + 16; SG = vT + 12; B = vT + 9
        def chk():
            o = L(f"v_xor_b32 v{B}, v{SG+2}, v{vNonce}")
            for r in range(8):
                o += L(f"v_xor_b32 v{B+1}, v{CL+4*r+3}, v{vNonce}\nv_or_b32 v{B}, v{B}, v{B+1}")
            o += L(f"v_cmp_ne_u32 vcc, 0, v{B}")
            return o
        ins = chk() + [SaveState(), I(f"s_cbranch_vccz COK{n}"), I(f"s_mov_b32 s{sT+8}, 4000"), Label(f"CSP{n}"), I(f"s_sleep {self.o['sleep']}")]
        ins += self.c1_loads_ins() + [Drain(vm=True, lgkm=False)] + chk()
        ins += [I(f"s_sub_u32 s{sT+8}, s{sT+8}, 1"), I(f"s_cbranch_vccz COK{n}"), I(f"s_cmp_lg_u32 s{sT+8}, 0"),
                I(f"s_cbranch_scc1 CSP{n}"), Label(f"COK{n}"), RestoreState()]
        return [Item(ins)]
    def job_consume1_sum(self):
        out = []
        a = vT + 16; SG = vT + 12
        for st in (4, 2, 1):
            for r in range(st):
                for j in range(3): out += L(f"v_add_f32 v{a+4*r+j}, v{a+4*r+j}, v{a+4*(r+st)+j}")
        for j in range(3): out += L(f"v_mov_b32 v{a+4+j}, v{a+j}")
        for j in range(3): out += L(f"v_permlane32_swap_b32 v{a+j}, v{a+4+j}")
        for j in range(3): out += L(f"v_add_f32 v{a+j}, v{a+j}, v{a+4+j}")
        out += L(f"v_mov_b32 v{vNMean}, v{SG}\nv_mov_b32 v{vRstd}, v{SG+1}")
        its = items(out)
        T = vT + 4
        ins = L(f"""s_mul_i32 s{sT}, s{sWave}, {CSB*4}
s_add_u32 s{sT}, s{sT}, {CST}
v_mul_u32_u24 v{T}, 12, v{vLane}
v_add_u32 v{T}, s{sT}, v{T}
s_mov_b64 s[{sEX}:{sEX+1}], exec
s_mov_b64 exec, 0x7ffffff""")
        for j in range(3):
            ins.append(I(f"ds_write_b32 v{T}, v{a+j} offset:{4*j}", tag='TAB'))
        ins += L(f"s_mov_b64 exec, s[{sEX}:{sEX+1}]")
        its.append(Item(ins))
        ins = L(f"""v_and_b32 v{T}, 31, v{vLane}
v_lshlrev_b32 v{T}, 2, v{T}
s_lshl_b32 s{sT}, s{sWave}, 7
s_add_u32 s{sT}, s{sT}, {STT}
v_add_u32 v{T}, s{sT}, v{T}""")
        ins.append(I(f"ds_write_b32 v{T}, v{vNMean}", tag='TAB'))
        ins.append(I(f"ds_write_b32 v{T}, v{vRstd} offset:512", tag='TAB'))
        its.append(Item(ins))
        its += items(L(f"""v_sub_f32 v{vNMean}, 0, v{vNMean}
v_mul_f32 v{vC3}, s{sLOG2E}, v{vRstd}
v_mul_f32 v{vK2}, v{vRstd}, v{vRstd}
v_sub_f32 v{vC1}, 0, v{vC3}
v_rcp_f32 v{vK2}, v{vK2}"""))
        its.append(Item([WaitTags(['TAB']), I("s_barrier")]))
        return its

    def epi_ffn(self, g, sU):
        acc0 = ACC0 if g == 0 else ACC1
        its = []
        C = vT
        E = vT + 16
        for p in range(self.nt[g]):
            a = acc0 + 16*p
            for q in range(4):
                blk = 2*g + (q >> 1)
                off = CST - HI + (blk*CSB + 16*p + 8*(q & 1)) * 4
                its.append(Item([I(f"ds_read_b128 v[{C+4*q}:{C+4*q+3}], v{vCSA} offset:{off}")]))
            ins = []
            for r in range(16): ins += L(f"v_fmac_f32 v{a+r}, v{vNMean}, v{C+r}")
            for j in range(8): ins += L(f"v_mul_f32 v{E+j}, v{vC1}, v{a+j}")
            for j in range(8): ins += L(f"v_exp_f32 v{E+j}, v{E+j}")
            for j in range(8): ins += L(f"v_mul_f32 v{a+j}, v{a+j}, v{a+8+j}")
            for j in range(8): ins += L(f"v_fma_f32 v{E+j}, v{E+j}, v{vK2}, v{vK2}")
            for j in range(8): ins += L(f"v_rcp_f32 v{E+j}, v{E+j}")
            for j in range(8): ins += L(f"v_mul_f32 v{a+j}, v{a+j}, v{E+j}")
            for j in range(4): ins += L(f"v_cvt_pk_bf16_f32 v{a+8+j}, v{a+2*j}, v{a+2*j+1}")
            its += items(ins)
            its.append(Item([I(f"s_add_u32 s{sT+10}, s{sTB}, s{sU}"),
                             I(f"buffer_store_dwordx4 v[{a+8}:{a+11}], v{vL16}, s[{SWS}:{SWS+3}], s{sT+10} offen offset:{p*1024}" if p < 4 else
                               f"buffer_store_dwordx4 v[{a+8}:{a+11}], v{vL16}, s[{SWS}:{SWS+3}], s{sT+10} offen offset:0", tag='OUT')]
                            if p < 4 else
                            [I(f"s_add_u32 s{sT+10}, s{sTB}, s{sU}"), I(f"s_add_u32 s{sT+10}, s{sT+10}, 4096"),
                             I(f"buffer_store_dwordx4 v[{a+8}:{a+11}], v{vL16}, s[{SWS}:{SWS+3}], s{sT+10} offen", tag='OUT')]))
        return its

    def epi_q_phi(self):
        its = []
        C = vT; E = vT + 16
        for p in range(5):
            a = ACC0 + 16*p
            for q in range(4):
                off = CST - HI + ((q >> 1)*CSB + 16*p + 8*(q & 1)) * 4
                its.append(Item([I(f"ds_read_b128 v[{C+4*q}:{C+4*q+3}], v{vCSA} offset:{off}")]))
            ins = []
            for r in range(16): ins += L(f"v_fmac_f32 v{a+r}, v{vNMean}, v{C+r}")
            its += items(ins)
            for h in range(2):
                b = a + 8*h
                ins = []
                for j in range(8): ins += L(f"v_mul_f32 v{E+j}, v{vC3}, v{b+j}")
                for j in range(8): ins += L(f"v_fma_f32 v{b+j}, v{b+j}, v{vRstd}, s{sEPS}")
                for j in range(8): ins += L(f"v_exp_f32_e64 v{E+j}, v{E+j} clamp")
                for j in range(8): ins += L(f"v_max_f32 v{b+j}, s{sEPS}, v{b+j}")
                for j in range(8): ins += L(f"v_add_f32 v{b+j}, v{b+j}, v{E+j}")
                for j in range(4): ins += L(f"v_cvt_pk_bf16_f32 v{b+j}, v{b+2*j}, v{b+2*j+1}")
                its += items(ins)
                unit = 5*h + p
                its.append(Item(L(f"s_add_u32 s{sT+10}, s{sTB}, s{sU0}\ns_add_u32 s{sT+10}, s{sT+10}, {unit*1024}") +
                                [I(f"buffer_store_dwordx4 v[{b}:{b+3}], v{vL16}, s[{SWS}:{SWS+3}], s{sT+10} offen", tag='OUT')]))
        return its

    def q_final(self):
        out = []
        P = vT
        Z = vT + 8
        M0, M1 = vT + 20, vT + 21
        Dd = vT + 22
        out += L(f"""v_lshrrev_b32 v{M1}, 5, v{vLane}
v_cvt_f32_u32 v{M1}, v{M1}
v_sub_f32 v{M0}, 1.0, v{M1}""")
        for h in range(8): out += L(f"v_mov_b32 v{P+h}, 0")
        slots = []
        for p in range(5):
            for q in range(4):
                Qe = (20 if q >= 2 else 0) + 4*p + 2*(q & 1)
                slots.append((p, q, Qe))
        for n, (p, q, Qe) in enumerate(slots):
            a = ACC0 + 16*p + 4*q
            z = Z + 4*(n % 2)
            out.append(I(f"ds_read_b128 v[{z}:{z+3}], v{vCSA} offset:{ZT - HI + Qe*16}"))
            H0, H1 = Qe // 5, (Qe + 1) // 5
            if H0 == H1:
                for i in range(4): out += L(f"v_fmac_f32 v{P+H0}, v{a+i}, v{z+i}")
            else:
                out += L(f"v_mul_f32 v{Dd}, v{a}, v{z}")
                for i in range(1, 4): out += L(f"v_fmac_f32 v{Dd}, v{a+i}, v{z+i}")
                out += L(f"v_fmac_f32 v{P+H0}, v{Dd}, v{M0}\nv_fmac_f32 v{P+H1}, v{Dd}, v{M1}")
        Q2 = vT + 8
        for h in range(8): out += L(f"v_mov_b32 v{Q2+h}, v{P+h}")
        for h in range(8): out += L(f"v_permlane32_swap_b32 v{P+h}, v{Q2+h}")
        for h in range(8): out += L(f"v_add_f32 v{P+h}, v{P+h}, v{Q2+h}")
        for h in range(8): out += L(f"v_add_f32 v{P+h}, s{sEPS}, v{P+h}")
        for h in range(8): out += L(f"v_rcp_f32 v{P+h}, v{P+h}")
        for n, (p, q, Qe) in enumerate(slots):
            a = ACC0 + 16*p + 4*q
            H0, H1 = Qe // 5, (Qe + 1) // 5
            if H0 == H1: inv = P + H0
            else:
                out += L(f"v_cndmask_b32 v{Dd}, v{P+H0}, v{P+H1}, s[{sM32}:{sM32+1}]"); inv = Dd
            for i in range(4): out += L(f"v_mul_f32 v{a+i}, v{a+i}, v{inv}")
        for p in range(5):
            a = ACC0 + 16*p
            for h in range(2):
                b = a + 8*h
                for j in range(4): out += L(f"v_cvt_pk_bf16_f32 v{b+j}, v{b+2*j}, v{b+2*j+1}")
                unit = 5*h + p
                out += L(f"s_add_u32 s{sT+10}, s{sTB}, s{sU0}\ns_add_u32 s{sT+10}, s{sT+10}, {unit*1024}")
                out.append(I(f"buffer_store_dwordx4 v[{b}:{b+3}], v{vL16}, s[{SWS}:{SWS+3}], s{sT+10} offen", tag='OUT'))
        return out

    def epi_kv(self):
        its = []
        MR, RR = vT, vT + 16
        cE, cLo, cM, cX = vT + 32, vT + 33, vT + 34, vT + 35
        CS = vT + 36
        E = vT + 38
        WA = vT + 46
        T = vT + 47
        st = L(f"""v_and_b32 v{T}, 16, v{vLane}
v_cmp_eq_u32 vcc, 0, v{T}
v_mov_b32 v{cE}, s{sEPS}
v_cndmask_b32 v{cE}, 0, v{cE}, vcc
v_mov_b32 v{cLo}, s{sEPS}
v_mov_b32 v{T+1}, 0xff800000
v_cndmask_b32 v{cLo}, v{T+1}, v{cLo}, vcc
v_cndmask_b32 v{cM}, 0, 1.0, vcc
v_mul_f32 v{cX}, s{sLOG2E}, v{cE}
v_sub_f32 v{cX}, 0, v{cX}""")
        st += L(f"""v_and_b32 v{T}, 15, v{vLane}
v_lshrrev_b32 v{T+1}, 4, v{vLane}
v_and_b32 v{T+1}, 1, v{T+1}
v_mul_u32_u24 v{T+2}, {CSB}, v{T+1}
v_add_u32 v{T+2}, v{T}, v{T+2}
v_lshlrev_b32 v{CS+1}, 2, v{T+2}
v_add_u32 v{CS+1}, {HI}, v{CS+1}
v_mul_u32_u24 v{T+1}, 80, v{T+1}
v_add_u32 v{T}, v{T}, v{T+1}
v_lshrrev_b32 v{T+1}, 5, v{vLane}
v_lshlrev_b32 v{T+1}, 1, v{T+1}
s_lshl_b32 s{sT}, s{sWave}, 2
v_add_u32 v{T+1}, s{sT}, v{T+1}
v_and_b32 v{T+2}, 15, v{T}
v_xor_b32 v{T+1}, v{T+1}, v{T+2}
v_lshlrev_b32 v{T+1}, 4, v{T+1}
v_lshlrev_b32 v{WA}, 8, v{T}
v_add_u32 v{WA}, v{WA}, v{T+1}
v_add_u32 v{WA}, {RG}, v{WA}
s_lshl_b32 s{sT}, s{sWave}, 7
v_add_u32 v{T}, s{sT}, v{vCSA}""")
        its += items(st)
        for g in range(4):
            its.append(Item([I(f"ds_read_b128 v[{MR+4*g}:{MR+4*g+3}], v{T} offset:{STT - HI + 32*g}")]))
            its.append(Item([I(f"ds_read_b128 v[{RR+4*g}:{RR+4*g+3}], v{T} offset:{STT - HI + 512 + 32*g}")]))
        its += items(L("\n".join(f"v_sub_f32 v{MR+r}, 0, v{MR+r}" for r in range(16))))
        for p in range(5):
            a = ACC0 + 16*p
            its.append(Item([I(f"ds_read_b32 v{CS}, v{CS+1} offset:{CST - HI + 64*p}")]))
            ins = []
            for r in range(16): ins += L(f"v_fmac_f32 v{a+r}, v{MR+r}, v{CS}")
            for r in range(16): ins += L(f"v_fma_f32 v{a+r}, v{a+r}, v{RR+r}, v{cE}")
            for h in range(2):
                b = a + 8*h
                for j in range(8): ins += L(f"v_fma_f32 v{E+j}, v{b+j}, s{sLOG2E}, v{cX}")
                for j in range(8): ins += L(f"v_exp_f32_e64 v{E+j}, v{E+j} clamp")
                for j in range(8): ins += L(f"v_max_f32 v{b+j}, v{b+j}, v{cLo}")
                for j in range(8): ins += L(f"v_fmac_f32 v{b+j}, v{E+j}, v{cM}")
                for j in range(4): ins += L(f"v_cvt_pk_bf16_f32 v{b+j}, v{b+2*j}, v{b+2*j+1}")
            its += items(ins)
            its.append(Item([I(f"ds_write_b128 v{WA}, v[{a}:{a+3}] offset:{p*4096}", tag='RGW'),
                             I(f"v_xor_b32 v{T+3}, 16, v{WA}"),
                             I(f"ds_write_b128 v{T+3}, v[{a+8}:{a+11}] offset:{p*4096}", tag='RGW')]))
        its.append(Item([WaitTags(['RGW']), I("s_barrier")]))
        RA, RB_ = vT, vT + 1
        T = vT + 2
        ins = L(f"""v_and_b32 v{T}, 31, v{vLane}
v_lshrrev_b32 v{T+1}, 5, v{vLane}
s_mul_i32 s{sT}, s{sWave}, 20
v_add_u32 v{T+2}, s{sT}, v{T}
v_and_b32 v{T+3}, 15, v{T+2}
v_xor_b32 v{T+3}, v{T+3}, v{T+1}
v_lshlrev_b32 v{T+3}, 4, v{T+3}
v_lshlrev_b32 v{T+4}, 8, v{T+2}
v_add_u32 v{T+4}, v{T+4}, v{T+3}
v_add_u32 v{RB_}, {RG}, v{T+4}
v_add_u32 v{RA}, {RG + 80*256}, v{T+4}
v_mov_b32 v{T+5}, {ONE}
v_cmp_gt_u32 vcc, 20, v{T}
v_cndmask_b32 v{RA}, v{T+5}, v{RA}, vcc
v_cndmask_b32 v{RB_}, v{T+5}, v{RB_}, vcc""")
        its += items(ins)
        FA, FB = vT + 8, vT + 24
        D = ACC0
        for tau in range(8):
            fa = FA + 8*(tau % 2); fb = fa + 4
            its.append(Item(L(f"""v_xor_b32 v{vT+40}, {tau<<5}, v{RA}
v_xor_b32 v{vT+41}, {tau<<5}, v{RB_}
ds_read_b128 v[{fa}:{fa+3}], v{vT+40}
ds_read_b128 v[{fb}:{fb+3}], v{vT+41}""")))
            c = f"v[{D}:{D+15}]" if tau else "0"
            its.append(Item([I(f"v_mfma_f32_32x32x16_bf16 v[{D}:{D+15}], v[{fa}:{fa+3}], v[{fb}:{fb+3}], {c}")]))
        ins = L(f"""s_lshl_b32 s{sT}, s{sJ}, 2
s_add_u32 s{sT}, s{sT}, s{sWave}
s_lshl_b32 s{sT}, s{sT}, 4
s_add_u32 s{sT}, s{sT}, s{sRB}
s_mul_i32 s46, s{sT}, {P_HR}
s_add_u32 s46, s46, {WS_P}
s_lshl_b32 s47, s{sT}, 7
s_add_u32 s47, s47, {WS_PZ}
v_and_b32 v{T}, 31, v{vLane}
v_lshlrev_b32 v{T+2}, 2, v{T}
v_lshlrev_b32 v{T}, 7, v{T}
v_lshrrev_b32 v{T+1}, 5, v{vLane}
v_lshl_add_u32 v{T}, v{T+1}, 4, v{T}
v_cmp_gt_u32 vcc, 20, v{vLane}
v_cndmask_b32 v{T+3}, v{T+2}, v{vBig}, vcc
v_cmp_lt_u32 vcc, 31, v{vLane}
v_cndmask_b32 v{T+3}, v{vBig}, v{T+2}, vcc
v_and_b32 v{T+1}, 31, v{vLane}
v_cmp_gt_u32 vcc, 20, v{T+1}
v_cndmask_b32 v{T+3}, v{vBig}, v{T+3}, vcc
v_cndmask_b32 v{T}, v{vBig}, v{T}, vcc""")
        its += items(ins)
        for g in range(3):
            its.append(Item([I(f"buffer_store_dwordx4 v[{D+4*g}:{D+4*g+3}], v{T}, s[{SWS}:{SWS+3}], s46 offen offset:{32*g}", tag='OUT')]))
        return its

    def need2_for_cgs(self, scg_list_setup):
        return scg_list_setup

    def poll2_issue(self, which):
        T = vT + 24
        if which == 'M':
            setup = L(f"""s_lshr_b32 s{sH}, s2, 3
s_and_b32 s{sNB}, s2, 7
s_lshr_b32 s{sT}, s{sH}, 2
s_lshr_b32 s{sT+1}, s{sT}, 1
s_and_b32 s{sT}, s{sT}, 1
s_lshl_b32 s{sT}, s{sT}, 3
s_lshl_b32 s{sT}, 2, s{sT}
v_and_b32 v{T}, 3, v{vLane}
v_mov_b32 v{T+1}, s{sT}
v_cmp_eq_u32 vcc, s{sT+1}, v{T}
v_cndmask_b32 v{vNeed}, 0, v{T+1}, vcc""")
        else:
            setup = L(f"""v_and_b32 v{T}, 3, v{vLane}
v_mov_b32 v{T+1}, 0x0202
v_cmp_eq_u32 vcc, s{sJ}, v{T}
v_cndmask_b32 v{vNeed}, 0, v{T+1}, vcc""")
        ins, chk, n, TT = self.poll(setup)
        return ins, (chk, n, TT)

    def z_table(self):
        T = vT + 48
        out = L(f"""v_lshrrev_b32 v{T}, 5, v{vLane}
v_and_b32 v{T+1}, 31, v{vLane}
s_lshl_b32 s{sT}, s{sJ}, 3
s_lshl_b32 s{sT+1}, s{sWave}, 1
s_add_u32 s{sT}, s{sT}, s{sT+1}
v_add_u32 v{T+2}, s{sT}, v{T}
v_lshlrev_b32 v{T+2}, 11, v{T+2}
v_lshl_add_u32 v{T+2}, v{T+1}, 2, v{T+2}
v_cmp_gt_u32 vcc, 20, v{T+1}
v_cndmask_b32 v{T+2}, v{vBig}, v{T+2}, vcc
s_mov_b32 s46, {WS_PZ}""")
        Z = ACC1 + 64
        for r in range(16):
            out.append(I(f"buffer_load_dword v{Z+r}, v{T+2}, s[{SWS}:{SWS+3}], s46 offen offset:{128*r} sc1"))
        o2 = []
        for st in (8, 4, 2, 1):
            for j in range(st): o2 += L(f"v_add_f32 v{Z+j}, v{Z+j}, v{Z+st+j}")
        o2 += L(f"""s_lshl_b32 s{sT}, s{sWave}, 1
v_add_u32 v{T}, s{sT}, v{T}
v_mul_u32_u24 v{T}, 20, v{T}
v_add_u32 v{T}, v{T}, v{T+1}
v_lshlrev_b32 v{T}, 2, v{T}
v_add_u32 v{T}, {HI}, v{T}
v_cmp_gt_u32 vcc, 20, v{T+1}
s_mov_b64 s[{sEX}:{sEX+1}], exec
s_mov_b64 exec, vcc""")
        o2.append(I(f"ds_write_b32 v{T}, v{Z} offset:{ZT-HI}", tag='ZT'))
        o2 += L(f"s_mov_b64 exec, s[{sEX}:{sEX+1}]")
        o2 += [WaitTags(['ZT']), I("s_barrier")]
        return out, o2

    def m_slice_loads(self):
        T = vT + 40
        R = self.mreg
        its = [Item(L(f"""v_lshlrev_b32 v{T}, 4, v0
v_and_b32 v{T+7}, 7, v0
v_cmp_gt_u32 vcc, 5, v{T+7}
v_cndmask_b32 v{T}, v{vBig}, v{T}, vcc
v_cmp_gt_u32 vcc, 160, v0
v_cndmask_b32 v{T}, v{vBig}, v{T}, vcc
s_mul_i32 s46, s{sH}, {16*P_HR}
s_add_u32 s46, s46, {WS_P}"""))]
        for r in range(16):
            its.append(Item([I(f"buffer_load_dwordx4 v[{R+4*r}:{R+4*r+3}], v{T}, s[{SWS}:{SWS+3}], s46 offen sc1"),
                             I(f"s_add_u32 s46, s46, {P_HR}")]))
        return its
    def m_slice_wo(self):
        T = vT + 41
        out = L(f"""s_mul_i32 s{sT}, s{sH}, {20*1280}
s_mul_i32 s{sT+1}, s{sNB}, 160
s_add_u32 s47, s{sT}, s{sT+1}
s_lshl_b32 s{sT}, s{sWave}, 6
v_add_u32 v{T+1}, s{sT}, v{vLane}""")
        def pat(dst, src):
            return L(f"""v_mul_u32_u24 v{T+2}, 6554, v{src}
v_lshrrev_b32 v{T+2}, 16, v{T+2}
v_mul_u32_u24 v{T+3}, 10, v{T+2}
v_sub_u32 v{T+3}, v{src}, v{T+3}
v_mul_u32_u24 v{T+2}, 1280, v{T+2}
v_lshl_add_u32 v{dst}, v{T+3}, 4, v{T+2}""")
        out += pat(T+4, T+1)
        out += L(f"v_add_u32 v{T+1}, 256, v{vLane}")
        out += pat(T+5, T+1)
        its = items(out)
        ins = L(f"s_lshl_b32 s{sT}, s{sWave}, 10\ns_add_u32 m0, s{sT}, {WOT}\ns_cmp_eq_u32 s{sWave}, 0")
        ins.append(I(f"buffer_load_dwordx4 v{T+4}, s[{SWO}:{SWO+3}], s47 offen lds", tag='WO'))
        ins += L(f"""s_cselect_b32 s{sT}, s47, {BIG}
s_cselect_b32 s{sT+1}, 0, 1024
s_add_u32 m0, s{sT+1}, {WOT + 4096}
s_nop 0""")
        ins.append(I(f"buffer_load_dwordx4 v{T+5}, s[{SWO}:{SWO+3}], s{sT} offen lds", tag='WO'))
        its.append(Item(ins))
        return its
    def m_slice_compute(self):
        R = self.mreg
        T = vT
        out = []
        for st in (32, 16, 8, 4):
            for j in range(st): out += L(f"v_add_f32 v{R+j}, v{R+j}, v{R+st+j}")
        out += L(f"""v_cvt_pk_bf16_f32 v{R}, v{R}, v{R+1}
v_cvt_pk_bf16_f32 v{R+1}, v{R+2}, v{R+3}
v_lshlrev_b32 v{T}, 3, v0
v_add_u32 v{T}, {HI}, v{T}""")
        out.append(I(f"ds_write_b64 v{T}, v[{R}:{R+1}] offset:{KVB-HI}", tag='KVB'))
        FA = vT + 8
        AD = vT + 16
        pre = L(f"""v_and_b32 v{T}, 15, v{vLane}
v_lshrrev_b32 v{T+1}, 4, v{vLane}
v_lshlrev_b32 v{T+2}, 6, v{T}
v_lshl_add_u32 v{T+2}, v{T+1}, 4, v{T+2}
v_add_u32 v{T+2}, {HI}, v{T+2}
v_lshrrev_b32 v{T+4}, 2, v{T}
v_lshl_add_u32 v{T+3}, v{T+1}, 3, v{T+4}
v_mul_u32_u24 v{T+3}, 160, v{T+3}
v_and_b32 v{T+4}, 3, v{vLane}
v_lshl_add_u32 v{T+3}, v{T+4}, 3, v{T+3}
v_add_u32 v{T+3}, {HI}, v{T+3}""")
        for half in range(2):
            pre += L(f"""s_mul_i32 s{sT}, s{sH}, 20
s_add_u32 s{sT}, s{sT}, {16*half}
v_lshlrev_b32 v{T+4}, 2, v{T+1}
v_add_u32 v{T+4}, s{sT}, v{T+4}
v_lshrrev_b32 v{T+5}, 5, v{T+4}
v_mul_u32_u24 v{T+5}, 5120, v{T+5}
v_bfe_u32 v{T+6}, v{T+4}, 4, 1
v_lshl_add_u32 v{T+5}, v{T+6}, 9, v{T+5}
v_bfe_u32 v{T+6}, v{T+4}, 2, 1
v_lshl_add_u32 v{T+5}, v{T+6}, 8, v{T+5}
v_bfe_u32 v{T+6}, v{T+4}, 3, 1
v_lshl_add_u32 v{T+5}, v{T+6}, 3, v{T+5}
v_lshl_add_u32 v{AD+half}, v{T}, 4, v{T+5}""")
            if half == 1:
                pre += L(f"v_cmp_eq_u32 vcc, 0, v{T+1}\nv_cndmask_b32 v{AD+1}, v{vBig}, v{AD+1}, vcc")
        pre += L(f"""s_mul_i32 s46, s{sNB}, {B_NB}
s_add_u32 s46, s46, {WS_B + 48*5120}""")
        out += pre
        out += [WaitTags(['KVB', 'WO']), I("s_barrier")]
        out += L(f"""ds_read_b128 v[{FA}:{FA+3}], v{T+2} offset:{KVB-HI}
ds_read_b128 v[{FA+4}:{FA+7}], v{T+2} offset:{KVB-HI+1024}""")
        FB = vT + 20
        DD = vT + 28
        for ps in range(2):
            fb = FB + 16*ps; dd = DD + 16*ps - (0 if ps == 0 else 4)
            fb = FB if ps == 0 else vT + 36
            dd = DD if ps == 0 else vT + 40
            if ps == 0:
                out += L(f"s_lshl_b32 s{sT}, s{sWave}, 5\nv_add_u32 v{T+4}, s{sT}, v{T+3}\ns_lshl_b32 s{sT+1}, s{sWave}, 10\ns_add_u32 s{sT+1}, s{sT+1}, s46")
                ad = T+4; so = sT+1
            else:
                out += L(f"v_add_u32 v{T+5}, 128, v{T+3}\ns_add_u32 s{sT+2}, s46, 4096\ns_cmp_eq_u32 s{sWave}, 0\ns_cselect_b32 s{sT+2}, s{sT+2}, {WS_END}")
                ad = T+5; so = sT+2
            out += L(f"""ds_read_b64_tr_b16 v[{fb}:{fb+1}], v{ad} offset:{WOT-HI}
ds_read_b64_tr_b16 v[{fb+2}:{fb+3}], v{ad} offset:{WOT-HI+640}""")
        for ps in range(2):
            fb = FB if ps == 0 else vT + 36
            dd = DD if ps == 0 else vT + 40
            for half in range(2):
                d = dd + 4*half
                out += L(f"v_mfma_f32_16x16x32_bf16 v[{d}:{d+3}], v[{FA+4*half}:{FA+4*half+3}], v[{fb}:{fb+3}], 0")
        for ps in range(2):
            dd = DD if ps == 0 else vT + 40
            so = sT+1 if ps == 0 else sT+2
            for half in range(2):
                d = dd + 4*half
                out += L(f"v_cvt_pk_bf16_f32 v{d}, v{d}, v{d+1}\nv_cvt_pk_bf16_f32 v{d+1}, v{d+2}, v{d+3}")
                out.append(I(f"buffer_store_dwordx2 v[{d}:{d+1}], v{AD+half}, s[{SWS}:{SWS+3}], s{so} offen", tag='OUT'))
        return out

    def build(self):
        p = self.p
        o = self.o
        self.prologue_common()
        nt = self.nt
        p.waittags(('X', 0), ('W', 0))
        p("s_barrier")
        p.extend(self.st('slot0'))
        p.extend(self.read_x(0))
        for tau in (0, 1):
            for pr in self.trs(tau): p.extend(pr)
        def at(its, e):
            if its: its[0].earliest = max(its[0].earliest, e)
            return its
        stI = lambda n: [Item(self.st(n))] if self.stamp else []
        F0 = []
        if not o['prod_upfront']:
            F0 += self.job_stats() + self.job_colsum()
        F0 += stI('pub')
        F0 += at(self.job_consume1_loads(), o['t_poll'])
        F0 += at(self.job_consume1_check(), o['t_chk']) + stI('chk1')
        F0 += at(self.job_consume1_sum(), o['t_sum']) + stI('tables')
        if self.typ == 'KV': F1 = self.epi_kv()
        elif self.typ == 'Q': F1 = self.epi_q_phi()
        else: F1 = self.epi_ffn(0, sU0)
        n0 = 40 * nt[0]
        nm = n0 + 40 * nt[1]
        at(F1, max(n0 + 3, o['t_epi0']))
        F1 += stI('epi0')
        F1 += at(self.job_w2t_load(), nm - o['t_w2end'])
        fill = F0 + F1
        if o.get('nofill'): fill = []
        if o.get('nofill0'): fill = F1
        quota = o['quota']
        win = o['win']
        fi = 0
        midx = 0
        pend = []
        def sched_w(s_): return self.dma_w_paced(s_)
        m0_open = [None]
        for tau in range(80):
            s = tau // 4; t = tau % 4; g = tau // 40
            pre = []
            if t == 2 and s + 1 < 20:
                while any(it.m0grp[1] == s + 1 for it in pend):
                    it = pend.pop(0); p.extend(it.ins); m0_open[0] = None if it.m0grp[2] >= 3 else it.m0grp
                    self.late = getattr(self, 'late', 0) + 1
                if o.get('barst') and s in o['barslots']:
                    pre += self.st(f'b{s}a') + [WaitTags([('W', s+1), ('X', s+1)])] + self.st(f'b{s}w') + [I("s_barrier")] + self.st(f'b{s}b')
                else:
                    pre += [WaitTags([('W', s+1), ('X', s+1)]), I("s_barrier")]
            if not o.get('barst') and tau in (4, 8, 12, 20, 30, 40, 50, 60, 70):
                pre += self.st(f'tau{tau}')
            pre.append(WaitTags([('TR', tau), ('XR', s)]))
            p.extend(pre)
            companions = []
            if tau == 0:
                pend += self.dma_x_paced(2)
                for s2 in range(2, win): pend += sched_w(s2)
            if t == 2:
                if s + win < 20: pend += sched_w(s + win)
                if s + 1 < 10: companions += [Item([x]) for x in self.read_x(s + 1)]
            if t == 0 and s + 3 < 10:
                pend += self.dma_x_paced(s + 3)
            if o['touches'] and not o.get('burst') and t == 1:
                c = s + o['ntouch0']
                if c < 20: companions += self.touch(c)
            if o['touches'] and o.get('burst'):
                for (bt, lo, hi) in o['bursts']:
                    if bt == tau:
                        for c in range(lo, hi): companions += self.touch(c)
            nxt = self.trs(tau + 2) if tau + 2 < 80 else []
            ntile = nt[g]
            ci = 0
            for pp in range(max(ntile, len(nxt))):
                cnt = 0
                if pp < ntile:
                    p.seq.append(self.mfma(tau, pp)); midx += 1
                if pp < len(nxt):
                    p.extend(nxt[pp]); cnt += 2
                want = (len(companions) * (pp + 1) + ntile - 1) // ntile
                while ci < min(want, len(companions)):
                    p.extend(companions[ci].ins); cnt += len(companions[ci].ins); ci += 1
                if pend and (midx % o['pace'] == 0 or len(pend) > o['backlog']):
                    it = pend.pop(0)
                    p.extend(it.ins); cnt += len(it.ins)
                    kind, idx, qq = it.m0grp
                    m0_open[0] = None if (kind == 'W' and qq in (3, 4)) or (kind == 'X' and qq == 3) else it.m0grp
                q = quota if g == 0 else o.get('quota1', quota)
                while fi < len(fill) and cnt < q and fill[fi].earliest <= midx and not (fill[fi].uses_m0 and m0_open[0] is not None):
                    p.extend(fill[fi].ins); cnt += sum(1 for x in fill[fi].ins if isinstance(x, Inst)); fi += 1
            while ci < len(companions):
                p.extend(companions[ci].ins); ci += 1
        assert not pend
        if getattr(self, 'late', 0): print(self.typ, 'late-flushed DMAs:', self.late)
        p.extend(self.st('mainend'))
        while fi < len(fill):
            p.extend(fill[fi].ins); fi += 1
        p.extend(self.st('left'))
        for it in self.epi_ffn(1, sU1): p.extend(it.ins)
        p.extend(self.st('epi1'))
        p.waittags('W2L')
        p("s_barrier")
        self.emit(self.job_w2t_store())
        p.extend(self.st('w2t'))
        if self.stamp:
            p.drain()
            p.extend(self.st('end'))
            p("s_memrealtime s[88:89]\ns_waitcnt lgkmcnt(0)\nv_writelane_b32 v92, s88, 31\nv_writelane_b32 v92, s100, 30")
            T = vT
            p(f"""s_lshl_b32 s{sT}, s2, 2
s_add_u32 s{sT}, s{sT}, s{sWave}
s_lshl_b32 s{sT}, s{sT}, 7
s_add_u32 s{sT}, s{sT}, {WS_TS}
v_lshlrev_b32 v{T}, 2, v{vLane}
s_mov_b64 exec, 0xffffffff
buffer_store_dword v92, v{T}, s[{SWS}:{SWS+3}], s{sT} offen""")
        p("s_endpgm")
        return p.seq

def gen_k1(stamp=False, opts=None):
    d = Prog()
    d("s_cmp_ge_u32 s2, 256\ns_cbranch_scc1 K1_EXIT")
    if stamp:
        d("s_memtime s[88:89]\ns_memrealtime s[100:101]\ns_waitcnt lgkmcnt(0)\ns_mov_b32 s3, s88")
    d(f"""s_load_dwordx4 s[4:7], s[0:1], {KA_X}
s_load_dwordx4 s[40:43], s[0:1], {KA_W1}
s_load_dwordx2 s[44:45], s[0:1], {KA_WS}
s_load_dwordx2 s[46:47], s[0:1], {KA_DBG}
s_load_dwordx2 s[76:77], s[0:1], {KA_W2}
s_load_dwordx2 s[78:79], s[0:1], {KA_WO}
s_lshr_b32 s60, s2, 6
s_cmp_lt_u32 s60, 2
s_cbranch_scc1 K1_KV
s_cmp_eq_u32 s60, 2
s_cbranch_scc1 K1_Q
s_branch K1_F
K1_EXIT:
s_endpgm""")
    txt = render(d.seq)
    global STAMP_NAMES
    STAMP_NAMES = {}
    for typ in ('F', 'KV', 'Q'):
        k = K1(typ, stamp, opts)
        STAMP_NAMES[typ] = k.stamp_names
        seq = [Label(f"K1_{typ}")] + [Inst("s_load_dword s60, s[0:1], 0")] * 0 + k.build()
        txt += render(finalize(seq))
    return txt

if __name__ == '__main__':
    import sys, json
    out = sys.argv[1] if len(sys.argv) > 1 else 'k1_only.s'
    opts = {}
    for kv in sys.argv[2:]:
        k, v = kv.split('=')
        try: v = int(v)
        except: pass
        if v in ('True', 'False'): v = (v == 'True')
        if isinstance(v, str) and v.startswith('('): v = eval(v)
        opts[k] = v
    body = gen_k1(stamp=(opts.pop('stamp', 1) == 1), opts=opts)
    hdr = f"; @launch kernel=k1_kernel grid=(256,1,1) block=(256,1,1) lds={LDS_BYTES}\n.amdgcn_target \"amdgcn-amd-amdhsa--gfx950\"\n"
    open(out, 'w').write(hdr + kernel_text('k1_kernel', body))
    json.dump(STAMP_NAMES, open(out + '.json', 'w'))
```

```python
from asmlib import *
from layout import *
from k1 import I, L, Item, items

BIG = 0x7fffffff
RB_W = 21504
KVB = 86016; WOT = 88064; ZS = 94208; ZB = 94464; INV = 96512
LDS2 = 104704
HI = 65536

class K2:
    def __init__(self, stamp=False, opts=None):
        self.stamp = stamp
        self.o = dict(depth=2, quota=5, t_sum=30, t_pq=70, t_flag=100, t_fz=140, t_chk=170, sleep=8)
        if opts: self.o.update(opts)
        self.p = Prog()
        self.nstamp = 0; self.stamp_names = []
    def st(self, name=''):
        if not self.stamp: return []
        i = self.nstamp; self.nstamp += 1; self.stamp_names.append(name)
        return [I("s_memtime s[70:71]"), Drain(vm=False, lgkm=True), I("s_waitcnt lgkmcnt(0)"), I("s_sub_u32 s70, s70, s3"), I(f"v_writelane_b32 v29, s70, {i}")]

    def build(self):
        p = self.p; o = self.o
        SA, SB, SX, SO, SWS, SWO = 8, 12, 16, 20, 24, 28
        sW, sRB, sNB, sUA, sUB, sH, sNM, sXO = range(40, 48)
        sT = 48; sEX = 60; sMO = 62; sEPS = 63
        vLane = 1
        vA0, vA1, vB0, vB1, vLW = 2, 3, 4, 5, 6
        vLR, vGO, vXR = 7, 12, 18
        vNonce, vBig = 28, 17
        vMO, vIA = 30, 40
        vT = 50
        PQ, ACC = 96, 176
        p("s_cmp_ge_u32 s2, 256\ns_cbranch_scc1 K2_END")
        if self.stamp:
            p("s_memtime s[70:71]\ns_memrealtime s[72:73]\ns_waitcnt lgkmcnt(0)\ns_mov_b32 s3, s70")
        p(f"s_load_dwordx2 s[4:5], s[0:1], {KA_WS}\ns_load_dwordx2 s[6:7], s[0:1], {KA_X}\ns_load_dwordx2 s[32:33], s[0:1], {KA_OUT}\ns_load_dwordx2 s[34:35], s[0:1], {KA_WO}")
        p(f"v_and_b32 v{vLane}, 63, v0\nv_lshrrev_b32 v{vT}, 6, v0")
        p(f"v_readfirstlane_b32 s{sW}, v{vT}")
        p(f"""s_and_b32 s{sT}, s2, 7
s_lshr_b32 s{sT+1}, s2, 3
s_and_b32 s{sRB}, s{sT}, 3
s_lshl_b32 s{sRB}, s{sRB}, 3
s_and_b32 s{sT+2}, s{sT+1}, 7
s_add_u32 s{sRB}, s{sRB}, s{sT+2}
s_lshr_b32 s{sNB}, s{sT}, 2
s_lshl_b32 s{sNB}, s{sNB}, 2
s_lshr_b32 s{sT+3}, s{sT+1}, 3
s_add_u32 s{sNB}, s{sNB}, s{sT+3}
s_lshr_b32 s{sH}, s2, 3
s_and_b32 s{sNM}, s2, 7""")
        p(f"""v_and_b32 v{vT}, 15, v{vLane}
v_lshrrev_b32 v{vT+1}, 4, v{vLane}
v_lshrrev_b32 v{vT+2}, 1, v{vT+1}
v_lshlrev_b32 v{vT+2}, 10, v{vT+2}
v_and_b32 v{vT+3}, 1, v{vT+1}
v_lshlrev_b32 v{vT+3}, 9, v{vT+3}
v_lshlrev_b32 v{vA0}, 4, v{vT}
v_add3_u32 v{vA0}, v{vA0}, v{vT+2}, v{vT+3}
v_add_u32 v{vA1}, {A_TB}, v{vA0}
v_lshlrev_b32 v{vB0}, 4, v{vLane}
v_add_u32 v{vB1}, 4096, v{vB0}
v_mov_b32 v{vBig}, {BIG}""")
        p("s_waitcnt lgkmcnt(0)")
        p(f"""s_mul_i32 s{sT}, s{sRB}, {2*A_TB}
s_add_u32 s{SA}, s4, s{sT}
s_addc_u32 s{SA+1}, s5, 0
s_mov_b32 s{SA+2}, {2*A_TB}
s_mov_b32 s{SA+3}, 0x20000
s_mul_i32 s{sT}, s{sNB}, {B_NB}
s_add_u32 s{sT}, s{sT}, {WS_B}
s_add_u32 s{SB}, s4, s{sT}
s_addc_u32 s{SB+1}, s5, 0
s_mov_b32 s{SB+2}, {B_NB}
s_mov_b32 s{SB+3}, 0x20000
s_lshl_b32 s{sUA}, s{sW}, 11
s_mul_i32 s{sUB}, s{sW}, 5120""")
        depth = o['depth']; RING = depth + 1
        opA = lambda s, pi: (s % RING) * 36 + pi * 4
        opB = lambda s, i: (s % RING) * 36 + 16 + i * 4
        def loadsF(s):
            n = []
            for tb in range(2):
                for half in range(2):
                    r = opA(s, tb*2 + half)
                    n.append(Item([I(f"buffer_load_dwordx4 a[{r}:{r+3}], v{vA0 if tb == 0 else vA1}, s[{SA}:{SA+3}], s{sUA} offen offset:{half*256}")]))
            for i in range(5):
                r = opB(s, i)
                n.append(Item([I(f"buffer_load_dwordx4 a[{r}:{r+3}], v{vB0 if i < 4 else vB1}, s[{SB}:{SB+3}], s{sUB} offen" + (f" offset:{i*1024}" if i < 4 else ""))]))
            n.append(Item(L(f"s_add_u32 s{sUA}, s{sUA}, 8192\ns_add_u32 s{sUB}, s{sUB}, 20480")))
            return n
        def loadsM(j, s):
            n = []
            for i in range(5):
                r = opB(s, i)
                for b in range(2):
                    n.append(Item([I(f"buffer_load_dwordx2 a[{r+2*b}:{r+2*b+1}], v{vMO+2*j+b}, s[{SWS}:{SWS+3}], s{sMO} offen offset:{i*640} sc1")]))
            return n
        for it in loadsF(0): p.extend(it.ins)
        p.extend(self.st('ld0'))
        p(f"""s_mov_b32 s{SWS}, s4
s_mov_b32 s{SWS+1}, s5
s_mov_b32 s{SWS+2}, {WS_END}
s_mov_b32 s{SWS+3}, 0x20000
s_mov_b32 s{SX}, s6
s_mov_b32 s{SX+1}, s7
s_mov_b32 s{SX+2}, {S*D*2}
s_mov_b32 s{SX+3}, 0x20000
s_mov_b32 s{SO}, s32
s_mov_b32 s{SO+1}, s33
s_mov_b32 s{SO+2}, {S*D*2}
s_mov_b32 s{SO+3}, 0x20000
s_mov_b32 s{SWO}, s34
s_mov_b32 s{SWO+1}, s35
s_mov_b32 s{SWO+2}, {640*640*2}
s_mov_b32 s{SWO+3}, 0x20000
s_mov_b32 s{sEPS}, 0x358637bd
s_mul_i32 s{sMO}, s{sNB}, {M_HN}
s_add_u32 s{sMO}, s{sMO}, {WS_M}""")
        for s in range(1, depth):
            for it in loadsF(s): p.extend(it.ins)
        p(f"v_mov_b32 v{vT+8}, 0\ns_mov_b32 s{sT}, {WS_NONCE}\nbuffer_load_dword v{vNonce}, v{vT+8}, s[{SWS}:{SWS+3}], s{sT} offen")
        p(f"""v_mul_u32_u24 v{vLW}, 336, v{vT}
v_lshl_add_u32 v{vLW}, v{vT+1}, 4, v{vLW}
s_mul_i32 s{sT}, s{sW}, {RB_W}
v_add_u32 v{vLW}, s{sT}, v{vLW}""")
        p(f"""v_lshrrev_b32 v{vT+2}, 1, v{vT+1}
v_lshlrev_b32 v{vT+2}, 2, v{vT+2}
v_and_b32 v{vT+3}, 1, v{vT+1}
v_add_u32 v{vT+2}, v{vT+2}, v{vT+3}
s_mul_i32 s{sT}, s{sW}, 2048
s_add_u32 s{sT}, s{sT}, {INV}
v_lshlrev_b32 v{vT+7}, 5, v{vT}
v_add_u32 v{vT+7}, s{sT}, v{vT+7}
s_lshl_b32 s{sT+1}, s{sW}, 3""")
        for j in range(5):
            for b in range(2):
                p(f"""v_add_u32 v{vT+3}, {8*j + 2*b}, v{vT+2}
v_mul_u32_u24 v{vT+4}, 52429, v{vT+3}
v_lshrrev_b32 v{vT+4}, 18, v{vT+4}
v_mul_u32_u24 v{vT+5}, 5, v{vT+4}
v_sub_u32 v{vT+5}, v{vT+3}, v{vT+5}
v_lshl_add_u32 v{vIA+2*j+b}, v{vT+4}, 2, v{vT+7}
v_add_u32 v{vT+4}, s{sT+1}, v{vT+4}
v_mul_u32_u24 v{vT+4}, 200, v{vT+4}
v_add_u32 v{vT+4}, v{vT+4}, v{vT+5}
v_lshlrev_b32 v{vT+4}, 7, v{vT+4}
v_lshl_add_u32 v{vMO+2*j+b}, v{vT}, 3, v{vT+4}""")
        for r in range(5):
            q = vT + 8
            p(f"""v_add_u32 v{q}, {256*r}, v0
v_mul_u32_u24 v{q+1}, 52429, v{q}
v_lshrrev_b32 v{q+1}, 20, v{q+1}
v_mul_u32_u24 v{q+2}, 20, v{q+1}
v_sub_u32 v{q+2}, v{q}, v{q+2}
v_mul_u32_u24 v{vLR+r}, 336, v{q+1}
v_lshl_add_u32 v{vLR+r}, v{q+2}, 4, v{vLR+r}
v_mul_u32_u24 v{vGO+r}, 1280, v{q+1}
v_lshl_add_u32 v{vGO+r}, v{q+2}, 3, v{vGO+r}""")
        p(f"s_mul_i32 s{sXO}, s{sRB}, {64*1280}\ns_mul_i32 s{sT}, s{sNB}, 160\ns_add_u32 s{sXO}, s{sXO}, s{sT}")
        p.extend(self.st('addr'))

        def at(its, e):
            if its: its[0].earliest = max(its[0].earliest, e)
            return its
        stI = lambda n: [Item(self.st(n))] if self.stamp else []
        F = []
        T = vT
        R = PQ
        F.append(Item(L(f"""v_lshlrev_b32 v{T}, 4, v0
v_and_b32 v{T+1}, 7, v0
v_cmp_gt_u32 vcc, 6, v{T+1}
v_cndmask_b32 v{T}, v{vBig}, v{T}, vcc
v_cmp_gt_u32 vcc, 160, v0
v_cndmask_b32 v{T}, v{vBig}, v{T}, vcc
s_lshl_b32 s64, s{sH}, 16
s_add_u32 s64, s64, {WS_P}""")))
        for r in range(16):
            F.append(Item([I(f"buffer_load_dwordx4 v[{R+4*r}:{R+4*r+3}], v{T}, s[{SWS}:{SWS+3}], s64 offen"), I(f"s_add_u32 s64, s64, {P_HR}")]))
        W = vT + 2
        def pat(dst, src):
            return L(f"""v_mul_u32_u24 v{W+2}, 6554, v{src}
v_lshrrev_b32 v{W+2}, 16, v{W+2}
v_mul_u32_u24 v{W+3}, 10, v{W+2}
v_sub_u32 v{W+3}, v{src}, v{W+3}
v_mul_u32_u24 v{W+2}, 1280, v{W+2}
v_lshl_add_u32 v{dst}, v{W+3}, 4, v{W+2}""")
        ins = L(f"""s_mul_i32 s{sT}, s{sH}, {20*1280}
s_mul_i32 s{sT+1}, s{sNM}, 160
s_add_u32 s65, s{sT}, s{sT+1}
s_lshl_b32 s{sT}, s{sW}, 6
v_add_u32 v{W+1}, s{sT}, v{vLane}""") + pat(W+4, W+1) + L(f"v_add_u32 v{W+1}, 256, v{vLane}") + pat(W+5, W+1)
        F += [Item(ins)]
        ins = L(f"s_lshl_b32 s{sT}, s{sW}, 10\ns_add_u32 m0, s{sT}, {WOT}\ns_cmp_eq_u32 s{sW}, 0")
        ins.append(I(f"buffer_load_dwordx4 v{W+4}, s[{SWO}:{SWO+3}], s65 offen lds", tag='WO'))
        ins += L(f"s_cselect_b32 s{sT}, s65, {BIG}\ns_cselect_b32 s{sT+1}, 0, 1024\ns_add_u32 m0, s{sT+1}, {WOT + 4096}\ns_nop 0")
        ins.append(I(f"buffer_load_dwordx4 v{W+5}, s[{SWO}:{SWO+3}], s{sT} offen lds", tag='WO'))
        F.append(Item(ins))
        for r in range(5):
            F.append(Item([I(f"buffer_load_dwordx2 v[{vXR+2*r}:{vXR+2*r+1}], v{vGO+r}, s[{SX}:{SX+3}], s{sXO} offen")]))
        out = []
        for st_ in (32, 16, 8, 4):
            for j in range(st_): out += L(f"v_add_f32 v{R+j}, v{R+j}, v{R+st_+j}")
        F += at(items(out), o['t_sum'])
        F.append(Item(L(f"""v_and_b32 v{T+1}, 7, v0
v_cmp_eq_u32 vcc, 5, v{T+1}
v_lshrrev_b32 v{T+2}, 3, v0
v_lshlrev_b32 v{T+2}, 2, v{T+2}
v_add_u32 v{T+2}, {HI}, v{T+2}
s_mov_b64 s[{sEX}:{sEX+1}], exec
s_mov_b64 exec, vcc""") + [I(f"ds_write_b32 v{T+2}, v{R} offset:{ZS-HI}", tag='KVB')] + L(f"""s_mov_b64 exec, s[{sEX}:{sEX+1}]
v_cndmask_b32 v{R}, v{R}, 0, vcc
v_cndmask_b32 v{R+1}, v{R+1}, 0, vcc
v_cndmask_b32 v{R+2}, v{R+2}, 0, vcc
v_cndmask_b32 v{R+3}, v{R+3}, 0, vcc""")))
        F += items(L(f"""v_cvt_pk_bf16_f32 v{R}, v{R}, v{R+1}
v_cvt_pk_bf16_f32 v{R+1}, v{R+2}, v{R+3}
v_lshlrev_b32 v{T}, 3, v0
v_add_u32 v{T}, {HI}, v{T}"""))
        F.append(Item([I(f"ds_write_b64 v{T}, v[{R}:{R+1}] offset:{KVB-HI}", tag='KVB')]))
        FA = vT + 8; AD = vT + 16; FB0 = vT + 20; DD0 = vT + 24; FB1 = vT + 32; DD1 = vT + 36
        F += items(L(f"""v_and_b32 v{T}, 15, v{vLane}
v_lshrrev_b32 v{T+1}, 4, v{vLane}
v_lshlrev_b32 v{T+2}, 6, v{T}
v_lshl_add_u32 v{T+2}, v{T+1}, 4, v{T+2}
v_add_u32 v{T+2}, {HI}, v{T+2}
v_lshrrev_b32 v{T+4}, 2, v{T}
v_lshl_add_u32 v{T+3}, v{T+1}, 3, v{T+4}
v_mul_u32_u24 v{T+3}, 160, v{T+3}
v_and_b32 v{T+4}, 3, v{vLane}
v_lshl_add_u32 v{T+3}, v{T+4}, 3, v{T+3}
v_add_u32 v{T+3}, {HI}, v{T+3}
v_lshlrev_b32 v{AD}, 7, v{T+1}
v_lshl_add_u32 v{AD}, v{T}, 3, v{AD}
v_lshlrev_b32 v{T+4}, 3, v{T}
v_add_u32 v{T+4}, 512, v{T+4}"""))
        F.append(Item(L(f"""v_cmp_eq_u32 vcc, 0, v{T+1}
s_nop 1
v_cndmask_b32 v{AD+1}, v{vBig}, v{T+4}, vcc
s_lshl_b32 s66, s{sH}, 3
s_add_u32 s66, s66, s{sNM}
s_mul_i32 s66, s66, {M_HN}
s_add_u32 s66, s66, {WS_M}""")))
        F.append(Item([WaitTags(['KVB', 'WO']), I("s_barrier")]))
        F.append(Item(L(f"ds_read_b128 v[{FA}:{FA+3}], v{T+2} offset:{KVB-HI}\nds_read_b128 v[{FA+4}:{FA+7}], v{T+2} offset:{KVB-HI+1024}")))
        F.append(Item(L(f"""s_lshl_b32 s{sT}, s{sW}, 5
v_add_u32 v{T+4}, s{sT}, v{T+3}
v_add_u32 v{T+5}, 128, v{T+3}
ds_read_b64_tr_b16 v[{FB0}:{FB0+1}], v{T+4} offset:{WOT-HI}
ds_read_b64_tr_b16 v[{FB0+2}:{FB0+3}], v{T+4} offset:{WOT-HI+640}
ds_read_b64_tr_b16 v[{FB1}:{FB1+1}], v{T+5} offset:{WOT-HI}
ds_read_b64_tr_b16 v[{FB1+2}:{FB1+3}], v{T+5} offset:{WOT-HI+640}""")))
        for (fb, dd) in ((FB0, DD0), (FB1, DD1)):
            for half in range(2):
                d = dd + 4*half
                F.append(Item([I(f"v_mfma_f32_16x16x32_bf16 v[{d}:{d+3}], v[{FA+4*half}:{FA+4*half+3}], v[{fb}:{fb+3}], 0")]))
        F.append(Item(L(f"""s_mul_i32 s67, s{sW}, 640
s_add_u32 s67, s67, s66
s_add_u32 s68, s66, 2560
s_cmp_eq_u32 s{sW}, 0
s_cselect_b32 s68, s68, {WS_END}""")))
        for (dd, so) in ((DD0, 67), (DD1, 68)):
            for half in range(2):
                d = dd + 4*half
                F += items(L(f"v_cvt_pk_bf16_f32 v{d}, v{d}, v{d+1}\nv_cvt_pk_bf16_f32 v{d+1}, v{d+2}, v{d+3}"))
                F.append(Item([I(f"buffer_store_dwordx2 v[{d}:{d+1}], v{AD+half}, s[{SWS}:{SWS+3}], s{so} offen sc1", tag='MST')]))
        F += stI('mst')
        pql = [Item(L(f"s_mul_i32 s64, s{sW}, 10240\ns_add_u32 s64, s64, {96*1024}"))]
        for j in range(5):
            for pi in range(4):
                r = PQ + (j*4 + pi)*4
                tb, half = pi >> 1, pi & 1
                pql.append(Item([I(f"buffer_load_dwordx4 v[{r}:{r+3}], v{vA0 if tb == 0 else vA1}, s[{SA}:{SA+3}], s64 offen offset:{half*256}")]))
            pql.append(Item(L("s_add_u32 s64, s64, 2048")))
        F += at(pql, o['t_pq'])
        G = vT + 8
        F += at([Item([WaitTags(['MST']), I("s_barrier")])], o['t_flag'])
        F.append(Item(L(f"""v_mul_u32_u24 v{T}, 12, v{vLane}
v_add_u32 v{T}, {HI}, v{T}
ds_read_b32 v{G}, v{T} offset:{ZS-HI}
ds_read_b32 v{G+1}, v{T} offset:{ZS-HI+4}
ds_read_b32 v{G+2}, v{T} offset:{ZS-HI+8}
s_lshl_b32 s{sT}, s{sH}, 3
s_add_u32 s{sT}, s{sT}, s{sNM}
s_lshl_b32 s{sT}, s{sT}, 7
s_add_u32 s{sT}, s{sT}, {WS_FZ}
s_cmp_eq_u32 s{sW}, 0
s_cselect_b32 s69, s{sT}, {WS_END}
v_lshlrev_b32 v{T+1}, 4, v{vLane}
v_cmp_gt_u32 vcc, 8, v{vLane}
v_mov_b32 v{G+3}, v{vNonce}
v_cndmask_b32 v{T+1}, v{vBig}, v{T+1}, vcc""") + [I(f"buffer_store_dwordx4 v[{G}:{G+3}], v{T+1}, s[{SWS}:{SWS+3}], s69 offen sc1")]))
        F += stI('flag')
        Z = vT + 12
        fzl = lambda: [I(f"buffer_load_dwordx4 v[{Z}:{Z+3}], v{T+2}, s[{SWS}:{SWS+3}], s64 offen sc1")]
        F += at([Item(L(f"""v_lshrrev_b32 v{T+2}, 3, v{vLane}
v_lshlrev_b32 v{T+2}, 10, v{T+2}
v_and_b32 v{T+3}, 7, v{vLane}
v_lshl_add_u32 v{T+2}, v{T+3}, 4, v{T+2}
s_lshl_b32 s64, s{sW}, 6
s_add_u32 s64, s64, s{sNB}
s_lshl_b32 s64, s64, 7
s_add_u32 s64, s64, {WS_FZ}""") + fzl())], o['t_fz'])
        chk = lambda: L(f"v_cmp_ne_u32 vcc, v{Z+3}, v{vNonce}")
        ins = chk() + [SaveState(), I("s_cbranch_vccz K2COK"), I(f"s_mov_b32 s{sT+8}, 4000"), Label("K2CSP"), I(f"s_sleep {o['sleep']}")] + fzl() + \
              [Drain(vm=True, lgkm=False)] + chk() + [I(f"s_sub_u32 s{sT+8}, s{sT+8}, 1"), I("s_cbranch_vccz K2COK"), I(f"s_cmp_lg_u32 s{sT+8}, 0"),
              I("s_cbranch_scc1 K2CSP"), Label("K2COK"), RestoreState()]
        F += at([Item(ins)], o['t_chk'])
        F += stI('fzok')
        F += items(L(f"""v_lshrrev_b32 v{T}, 3, v{vLane}
v_mul_u32_u24 v{T}, 20, v{T}
v_and_b32 v{T+1}, 7, v{vLane}
v_mul_u32_u24 v{T+1}, 3, v{T+1}
v_cvt_pk_bf16_f32 v{Z}, v{Z}, v{Z+1}
v_cvt_pk_bf16_f32 v{Z+2}, v{Z+2}, v{Z+2}
s_lshl_b32 s{sT}, s{sW}, 9
s_add_u32 s64, s{sT}, {ZB}"""))
        for i_ in range(3):
            src = Z if i_ < 2 else Z + 2
            op = "ds_write_b16" if i_ != 1 else "ds_write_b16_d16_hi"
            F.append(Item(L(f"""v_add_u32 v{T+2}, {i_}, v{T+1}
v_add_u32 v{T+3}, v{T}, v{T+2}
v_cmp_gt_u32 vcc, 20, v{T+2}
v_mov_b32 v{T+4}, 220
v_cndmask_b32 v{T+3}, v{T+4}, v{T+3}, vcc
v_lshlrev_b32 v{T+3}, 1, v{T+3}
v_add_u32 v{T+3}, s64, v{T+3}""") + [I(f"{op} v{T+3}, v{src}", tag='ZBW')]))
        ZF = vT + 20
        F.append(Item([WaitTags(['ZBW'])] + L(f"""v_lshrrev_b32 v{T+1}, 4, v{vLane}
v_lshrrev_b32 v{T+2}, 1, v{T+1}
v_lshlrev_b32 v{T+2}, 2, v{T+2}
v_and_b32 v{T+3}, 1, v{T+1}
v_add_u32 v{T+2}, v{T+2}, v{T+3}
v_lshlrev_b32 v{T+5}, 3, v{T+2}
v_add_u32 v{T+5}, s64, v{T+5}
v_and_b32 v{T+6}, 15, v{vLane}""")))
        for j in range(5):
            for b in range(2):
                F.append(Item([I(f"ds_read_b64 v[{ZF+4*j+2*b}:{ZF+4*j+2*b+1}], v{T+5} offset:{(8*j + 2*b)*8}")]))
        for j in range(5):
            for b in range(2):
                F.append(Item(L(f"""v_add_u32 v{T+3}, {8*j + 2*b}, v{T+2}
v_mul_u32_u24 v{T+3}, 52429, v{T+3}
v_lshrrev_b32 v{T+3}, 18, v{T+3}
v_cmp_eq_u32 vcc, v{T+3}, v{T+6}
s_nop 1
v_cndmask_b32 v{ZF+4*j+2*b}, 0, v{ZF+4*j+2*b}, vcc
v_cndmask_b32 v{ZF+4*j+2*b+1}, 0, v{ZF+4*j+2*b+1}, vcc""")))
        DN = vT + 40
        DN = vT + 2
        DNr = [vT + 2, vT + 6, vT + 10, vT + 14]
        for j in range(5):
            for pi in range(4):
                d = DNr[pi]; r = PQ + (j*4 + pi)*4
                c = f"v[{d}:{d+3}]" if j else "0"
                F.append(Item([I(f"v_mfma_f32_16x16x32_bf16 v[{d}:{d+3}], v[{ZF+4*j}:{ZF+4*j+3}], v[{r}:{r+3}], {c}")]))
        for pi in range(4):
            d = DNr[pi]
            F += items(L("\n".join(f"v_add_f32 v{d+i}, s{sEPS}, v{d+i}" for i in range(4))))
        for pi in range(4):
            d = DNr[pi]
            F += items(L("\n".join(f"v_rcp_f32 v{d+i}, v{d+i}" for i in range(4))))
        F.append(Item(L(f"""v_and_b32 v{vT+18}, 15, v{vLane}
v_lshlrev_b32 v{vT+18}, 5, v{vT+18}
v_lshrrev_b32 v{vT+19}, 4, v{vLane}
v_lshl_add_u32 v{vT+18}, v{vT+19}, 4, v{vT+18}
s_lshl_b32 s{sT}, s{sW}, 11
s_add_u32 s{sT}, s{sT}, {INV}
v_add_u32 v{vT+18}, s{sT}, v{vT+18}
s_mov_b64 s[{sEX}:{sEX+1}], exec
s_mov_b64 exec, 0xffffffff""") + [I(f"ds_write_b128 v{vT+18}, v[{DNr[pi]}:{DNr[pi]+3}] offset:{pi*512}", tag='INVW') for pi in range(4)] +
                      L(f"s_mov_b64 exec, s[{sEX}:{sEX+1}]")))
        F += stI('inv')

        def scale(j):
            out = [WaitTags(['INVW'])] if j == 0 else []
            IV = vT + 20 + 8*(j % 2)
            E = vT + 36
            ins = []
            for pi in range(4):
                for b in range(2):
                    ins.append(I(f"ds_read_b32 v{IV+2*pi+b}, v{vIA+2*j+b} offset:{pi*512}"))
            res = [Item(out + ins)]
            for pi in range(4):
                r = PQ + (j*4 + pi)*4
                o2 = []
                for k in range(4): o2 += L(f"v_lshlrev_b32 v{E+2*k}, 16, v{r+k}\nv_and_b32 v{E+2*k+1}, 0xffff0000, v{r+k}")
                for k in range(4): o2 += L(f"v_mul_f32 v{E+2*k}, v{E+2*k}, v{IV+2*pi+(k>>1)}\nv_mul_f32 v{E+2*k+1}, v{E+2*k+1}, v{IV+2*pi+(k>>1)}")
                for k in range(4): o2 += L(f"v_cvt_pk_bf16_f32 v{r+k}, v{E+2*k}, v{E+2*k+1}")
                res += items(o2)
            return res

        NF, NS = 12, 17
        midx = 0; fi = 0
        quota = o['quota']
        F += scale(0)
        nF_before_attn = len(F)
        for s in range(NS):
            attn = s >= NF
            j = s - NF
            if attn:
                need = nF_before_attn if j == 0 else self._need[j]
                while fi < need:
                    p.extend(F[fi].ins); fi += 1
                if j == 0: self._need = {}
                if j + 1 < 5:
                    F += scale(j + 1); self._need[j + 1] = len(F)
                p.extend(self.st(f'a{j}'))
            mf = []
            for pi in range(4):
                for i in range(5):
                    d = ACC + (pi*5 + i)*4
                    a = opB(s, i)
                    bsrc = f"v[{PQ + (j*4+pi)*4}:{PQ + (j*4+pi)*4 + 3}]" if attn else f"a[{opA(s, pi)}:{opA(s, pi)+3}]"
                    c = f"v[{d}:{d+3}]" if s > 0 else "0"
                    mf.append(I(f"v_mfma_f32_16x16x32_bf16 v[{d}:{d+3}], a[{a}:{a+3}], {bsrc}, {c}"))
            sn = s + depth
            ld = loadsF(sn) if sn < NF else (loadsM(sn - NF, sn) if sn < NS else [])
            if sn == NF:
                self._chk_idx = next(k for k, it in enumerate(F) if any(isinstance(x, Label) and x.name == 'K2COK' for x in it.ins))
                while fi <= self._chk_idx:
                    p.extend(F[fi].ins); fi += 1
            k = 0
            for m in mf:
                p.seq.append(m); midx += 1
                cnt = 0
                if k < len(ld):
                    p.extend(ld[k].ins); cnt += len(ld[k].ins); k += 1
                while fi < len(F) and cnt < quota and F[fi].earliest <= midx:
                    p.extend(F[fi].ins); cnt += sum(1 for x in F[fi].ins if isinstance(x, Inst)); fi += 1
            while k < len(ld):
                p.extend(ld[k].ins); k += 1
            if s in (0, 3, 7, 11): p.extend(self.st(f's{s}'))
        assert fi == len(F), (fi, len(F))
        p.extend(self.st('main'))
        for pi in range(4):
            for i in range(5):
                d = ACC + (pi*5 + i)*4
                p(f"ds_write_b128 v{vLW}, v[{d}:{d+3}] offset:{pi*5376 + i*64}")
        p.drain(vm=False)
        p("s_barrier")
        TT = 96
        for r in range(5):
            for w in range(4):
                t = TT + r*24 + w*4
                va = vLR + r
                if w*RB_W > 65535:
                    p(f"v_add_u32 v{TT + r*24 + 22}, {w*RB_W}, v{va}\nds_read_b128 v[{t}:{t+3}], v{TT + r*24 + 22}")
                else:
                    p(f"ds_read_b128 v[{t}:{t+3}], v{va} offset:{w*RB_W}")
        for r in range(5):
            t = TT + r*24; x = vXR + 2*r; u = t + 16
            p(f"""v_lshlrev_b32 v{u}, 16, v{x}
v_and_b32 v{u+1}, 0xffff0000, v{x}
v_lshlrev_b32 v{u+2}, 16, v{x+1}
v_and_b32 v{u+3}, 0xffff0000, v{x+1}""")
            for jj in range(4): p(f"v_add_f32 v{t+jj}, v{t+jj}, v{t+4+jj}")
            for jj in range(4): p(f"v_add_f32 v{t+8+jj}, v{t+8+jj}, v{t+12+jj}")
            for jj in range(4): p(f"v_add_f32 v{u+jj}, v{u+jj}, v{t+jj}")
            for jj in range(4): p(f"v_add_f32 v{u+jj}, v{u+jj}, v{t+8+jj}")
            p(f"v_cvt_pk_bf16_f32 v{u+4}, v{u}, v{u+1}\nv_cvt_pk_bf16_f32 v{u+5}, v{u+2}, v{u+3}")
            p(f"buffer_store_dwordx2 v[{u+4}:{u+5}], v{vGO+r}, s[{SO}:{SO+3}], s{sXO} offen")
        if self.stamp:
            p.extend(self.st('st'))
            p.drain()
            p.extend(self.st('end'))
            p(f"""s_memrealtime s[70:71]
s_waitcnt lgkmcnt(0)
v_writelane_b32 v29, s70, 31
v_writelane_b32 v29, s72, 30
s_lshl_b32 s{sT}, s2, 2
s_add_u32 s{sT}, s{sT}, s{sW}
s_lshl_b32 s{sT}, s{sT}, 7
s_add_u32 s{sT}, s{sT}, {WS_TS + 0x40000}
v_lshlrev_b32 v{vT}, 2, v{vLane}
s_mov_b64 exec, 0xffffffff
buffer_store_dword v29, v{vT}, s[{SWS}:{SWS+3}], s{sT} offen""")
        p.label("K2_END")
        p("s_endpgm")
        return render(finalize(p.seq))

def gen_k2(stamp=False, opts=None):
    k = K2(stamp, opts)
    t = k.build()
    global STAMP_NAMES
    STAMP_NAMES = k.stamp_names
    return t
```

```python
S, D, F = 2048, 640, 1536
WS_A  = 0x0
A_TB  = 136 * 1024
WS_B  = 0x900000
B_NB  = 48 * 5 * 1024
WS_M  = 0xB00000
M_HN  = 3200
WS_FZ = 0xBD0000
WS_NONCE = 0xBE0000
WS_P  = 0xC00000
P_HR  = 32 * 128
WS_PZ = 0xE90000
WS_ST = 0xE00000
WS_CS = 0xF00000
WS_TS = 0x1000000
WS_END = 0x1100000
KA_X, KA_WQKV, KA_WO, KA_BX, KA_W1, KA_W3, KA_W2, KA_OUT, KA_DBG, KA_WS = [8 * i for i in range(10)]
```

```python
import sys, json
from asmlib import *
from layout import *
import k1, k2
HDR = """; Kernarg layout: d_in[0..6] = A_x, A_wqkv, A_wo, B_x, B_w1, B_w3, B_w2 ; d_out ; d_debug ; d_ws  (8 bytes each)
"""
K1OPT = dict(prod_upfront=False, t_poll=140, t_chk=180, t_sum=180, touches=False, order='DNPR')
def build(path, stamp=False, k1opts=None, k2opts=None):
    h = HDR
    h += f"; @launch kernel=k1_kernel grid=(256,1,1) block=(256,1,1) lds={k1.LDS_BYTES}\n"
    h += f"; @launch kernel=k2_kernel grid=(256,1,1) block=(256,1,1) lds={k2.LDS2}\n"
    h += '.amdgcn_target "amdgcn-amd-amdhsa--gfx950"\n'
    o1 = dict(K1OPT); o1.update(k1opts or {})
    s = h + kernel_text('k1_kernel', k1.gen_k1(stamp=stamp, opts=o1)) + kernel_text('k2_kernel', k2.gen_k2(stamp=stamp, opts=k2opts))
    open(path, 'w').write(s)
    if stamp: json.dump(dict(k1=k1.STAMP_NAMES, k2=k2.STAMP_NAMES), open(path + '.json', 'w'))
def parse(args):
    o1, o2 = {}, {}
    for kv in args:
        k, v = kv.split('=')
        try: v = int(v)
        except: pass
        if v in ('True', 'False'): v = (v == 'True')
        if isinstance(v, str) and v.startswith('('): v = eval(v)
        (o2 if k.startswith('k2.') else o1)[k.replace('k2.', '')] = v
    return o1, o2
if __name__ == '__main__':
    out = sys.argv[1]
    o1, o2 = parse(sys.argv[2:])
    stamp = o1.pop('stamp', 0) == 1
    build(out, stamp, o1, o2)
```
